```python
import torch

def _softmax(x, axis=-1):
    return torch.softmax(x, dim=axis)

def _gelu(x):
    return torch.nn.functional.gelu(x, approximate='tanh')

def _silu(x):
    return torch.nn.functional.silu(x)

def _sigmoid(x):
    return torch.sigmoid(x)

def _layernorm(x, axis=-1, eps=1e-05):
    m = x.mean(dim=axis, keepdim=True)
    v = x.var(dim=axis, keepdim=True, unbiased=False)
    return (x - m) / torch.sqrt(v + eps)

def _scatter_add(tgt, idx, src, axis=0):
    return tgt.clone().index_add_(axis, idx, src)

def _segment_sum(src, seg, n):
    out = torch.zeros((n,) + src.shape[1:], dtype=src.dtype)
    return out.index_add_(0, seg, src)

def _pad(x, pw):
    flat = tuple((v for pair in reversed(pw) for v in pair))
    return torch.nn.functional.pad(x, flat)
kernel_name = 'adaLN_cond__gqa_block_cached__glu_gated_swiglu__prompt'

def setup_inputs():

    _w = lambda a: (lambda t: t.to(torch.bfloat16) if t.is_floating_point() else t)(torch.as_tensor(a))

    def _A_setup():
        B, Sq, D = (1, 2048, 576)
        Hq, Hkv, Sk, Dh = (32, 16, 2048, 128)
        assert Hq % Hkv == 0, (Hq, Hkv)
        return {'x': _w((lambda *s: torch.randn(*s, dtype=torch.bfloat16) * 0.05)(B, Sq, D)), 'k_cache': _w((lambda *s: torch.randn(*s, dtype=torch.bfloat16) * 3.2)(B, Hkv, Sk, Dh)), 'v_cache': _w((lambda *s: torch.randn(*s, dtype=torch.bfloat16) * 1.6)(B, Hkv, Sk, Dh)), 'wq': _w((lambda *s: torch.randn(*s, dtype=torch.bfloat16) * 3.2)(D, Hq * Dh) * D ** (-0.5)), 'wo': _w((lambda *s: torch.randn(*s, dtype=torch.bfloat16) * 1.6)(Hq * Dh, D) * (Hq * Dh) ** (-0.5))}
    _A_in = _A_setup()

    def _B_setup():
        B, S, D, F = (1, 2048, 576, 4608)
        return {'x': _w((lambda *s: torch.randn(*s, dtype=torch.bfloat16) * 0.05)(B, S, D)), 'w1': _w((lambda *s: torch.randn(*s, dtype=torch.bfloat16) * 0.8)(D, F) * (2.0 / D) ** 0.5), 'w3': _w((lambda *s: torch.randn(*s, dtype=torch.bfloat16) * 0.8)(D, F) * (2.0 / D) ** 0.5), 'w2': _w((lambda *s: torch.randn(*s, dtype=torch.bfloat16) * 0.8)(F, D) * (2.0 / F) ** 0.5)}
    _B_in = _B_setup()
    return {'A_x': _A_in['x'], 'A_k_cache': _A_in['k_cache'], 'A_v_cache': _A_in['v_cache'], 'A_wq': _A_in['wq'], 'A_wo': _A_in['wo'], 'B_x': _B_in['x'], 'B_w1': _B_in['w1'], 'B_w3': _B_in['w3'], 'B_w2': _B_in['w2'], 'c': _w((lambda *s: torch.randn(*s, dtype=torch.bfloat16) * 0.2)(1, 576) * 8.0), 'w_mod': _w((lambda *s: torch.randn(*s, dtype=torch.bfloat16) * 0.2)(576, 6 * 576) * 576 ** (-0.5) * 8.0)}

def reference(A_x, A_k_cache, A_v_cache, A_wq, A_wo, B_x, B_w1, B_w3, B_w2, c, w_mod):

    def _A_ref(x, k_cache, v_cache, wq, wo):
        B, Sq, D = x.shape
        Hq, Dh = (32, 128)
        Hkv = k_cache.shape[1]
        rep = Hq // Hkv
        q = (lambda x, *d: x.permute(*d))((x @ wq).reshape(B, Sq, Hq, Dh), 0, 2, 1, 3)
        k = (lambda x, n, axis: torch.repeat_interleave(x, n, dim=axis))(k_cache, rep, axis=1)
        v = (lambda x, n, axis: torch.repeat_interleave(x, n, dim=axis))(v_cache, rep, axis=1)
        scores = torch.einsum('bhqd,bhkd->bhqk', q, k) * Dh ** (-0.5)
        p = _softmax(scores, axis=-1)
        o = torch.einsum('bhqk,bhkd->bhqd', p, v)
        return (lambda x, *d: x.permute(*d))(o, 0, 2, 1, 3).reshape(B, Sq, Hq * Dh) @ wo

    def _B_ref(x, w1, w3, w2):
        gate = torch.einsum('bsd,df->bsf', x, w1)
        up = torch.einsum('bsd,df->bsf', x, w3)
        h = _silu(gate) * up
        out = torch.einsum('bsf,fd->bsd', h, w2)
        return out
    x = A_x
    mod = (_silu(c) @ w_mod).reshape(c.shape[0], 6, 1, -1)
    sa, ca, ga, sb, cb, gb = (mod[:, 0].clone(), mod[:, 1].clone(), mod[:, 2].clone(), mod[:, 3].clone(), mod[:, 4].clone(), mod[:, 5].clone())
    h = _layernorm(x, axis=-1) * (1 + ca) + sa
    x = x + ga * _A_ref(h, A_k_cache, A_v_cache, A_wq, A_wo)
    h = _layernorm(x, axis=-1) * (1 + cb) + sb
    x = x + gb * _B_ref(h, B_w1, B_w3, B_w2)
    return x
```

```python
import re

TRANS = ("v_exp_f32", "v_log_f32", "v_rcp_f32", "v_rsq_f32", "v_sqrt_f32", "v_sin_f32", "v_cos_f32")
_REG = re.compile(r"^(-|\|)?(v|a|s)(\d+)\|?$")
_RNG = re.compile(r"^(v|a|s)\[(\d+):(\d+)\]$")


def regs_of(tok):
    tok = tok.strip()
    if tok.startswith("-"):
        tok = tok[1:]
    if tok.startswith("abs(") and tok.endswith(")"):
        tok = tok[4:-1]
    m = _RNG.match(tok)
    if m:
        return {(m.group(1), i) for i in range(int(m.group(2)), int(m.group(3)) + 1)}
    m = _REG.match(tok)
    if m:
        return {(m.group(2), int(m.group(3)))}
    if tok == "vcc":
        return {("s", 106), ("s", 107)}
    if tok == "exec":
        return {("s", 126), ("s", 127)}
    if tok == "m0":
        return {("s", 124)}
    return set()


class Ins:
    __slots__ = ("text", "mn", "kind", "rd", "wr", "srcc", "srcab", "nops")

    def __init__(self, text):
        self.text = text
        t = text.split(";")[0].strip()
        parts = t.split(None, 1)
        self.mn = parts[0] if parts else ""
        rest = parts[1] if len(parts) > 1 else ""
        ops = [o.strip() for o in rest.split(",")] if rest else []
        if ops:
            last = ops[-1].split()
            ops[-1] = last[0] if last else ""
            mods = last[1:]
        else:
            mods = []
        mn = self.mn
        self.rd, self.wr, self.srcc, self.srcab = set(), set(), set(), set()
        self.nops = 1
        R = [regs_of(o) for o in ops]
        if mn.endswith(":") or mn.startswith("."):
            self.kind = "label"
            self.nops = 0
        elif mn.startswith("v_mfma"):
            self.kind = "mfma"
            self.wr = R[0]
            self.srcab = R[1] | R[2]
            self.srcc = R[3]
            self.rd = self.srcab | self.srcc
        elif mn.startswith("v_cmp"):
            self.kind = "valu"
            self.wr = R[0]
            self.rd = set().union(*R[1:])
        elif mn.startswith("v_permlane") and "swap" in mn:
            self.kind = "valu"
            self.wr = R[0] | R[1]
            self.rd = R[0] | R[1]
        elif mn.startswith("v_"):
            self.kind = "valu"
            self.wr = set(R[0])
            srcs = R[1:]
            if mn.startswith(("v_add_co", "v_sub_co", "v_addc_co", "v_subb_co")):
                self.wr |= R[1]
                srcs = R[2:]
            self.rd = set().union(*srcs) if srcs else set()
            if mn.startswith(("v_fmac", "v_dot2c", "v_pk_fmac")):
                self.rd |= R[0]
            if mn.startswith("v_cndmask") and len(ops) == 3:
                self.rd |= regs_of("vcc")
        elif mn.startswith("ds_read") or mn.startswith("ds_bpermute") or mn.startswith("ds_swizzle"):
            self.kind = "lds"
            self.wr = R[0]
            self.rd = set().union(*R[1:])
        elif mn.startswith("ds_"):
            self.kind = "lds"
            self.rd = set().union(*R)
        elif mn.startswith("buffer_load") or mn.startswith("global_load"):
            self.kind = "vmem"
            if "lds" in mods or "_lds_" in mn:
                self.rd = set().union(*R) | regs_of("m0")
            else:
                self.wr = R[0]
                self.rd = set().union(*R[1:])
        elif mn.startswith("buffer_") or mn.startswith("global_"):
            self.kind = "vmem"
            self.rd = set().union(*R) if R else set()
        elif mn == "s_nop":
            self.kind = "salu"
            self.nops = int(ops[0], 0) + 1
        elif mn in ("s_waitcnt", "s_barrier", "s_endpgm", "s_setprio", "s_sleep") or mn.startswith(("s_branch", "s_cbranch")):
            self.kind = "ctl"
        elif mn.startswith("s_cmp") or mn.startswith("s_bitcmp"):
            self.kind = "salu"
            self.rd = set().union(*R)
        elif mn.startswith("s_load") or mn.startswith("s_mem"):
            self.kind = "smem"
            self.wr = R[0]
            self.rd = set().union(*R[1:]) if len(R) > 1 else set()
        elif mn.startswith("s_"):
            self.kind = "salu"
            self.wr = R[0] if R else set()
            self.rd = set().union(*R[1:]) if len(R) > 1 else set()
        else:
            raise ValueError("unknown instruction: " + text)

    @property
    def cost(self):
        if self.kind == "label":
            return 0
        if self.kind == "mfma":
            return 8
        if self.mn in TRANS or self.mn.replace("_e32", "").replace("_e64", "") in TRANS:
            return 8
        return 4 * self.nops


def _isv(rs):
    return {r for r in rs if r[0] in "va"}


def _iss(rs):
    return {r for r in rs if r[0] == "s"}


def _base(mn):
    return mn.replace("_e32", "").replace("_e64", "")


def need_between(a, b):
    need, why = 0, ""
    if a.kind == "valu":
        wv = _isv(a.wr)
        ws = _iss(a.wr)
        if b.kind == "mfma" and wv & b.rd:
            need, why = 2, "valu->mfma"
        if _base(a.mn) in TRANS and b.kind in ("valu", "lds", "vmem") and wv & b.rd:
            need, why = max(need, 1), "trans->use"
        if b.mn.startswith("v_permlane") and wv & b.rd:
            need, why = max(need, 2), "valu->permlane"
        if "dpp" in b.text and wv & b.rd:
            need, why = max(need, 2), "valu->dpp"
        if b.mn.startswith(("v_readfirstlane", "v_readlane")) and wv & b.rd:
            need, why = max(need, 1), "valu->readlane"
        if b.kind == "vmem" and ws & b.rd:
            need, why = max(need, 5), "valu sgpr->vmem"
        if b.kind == "valu" and ws & b.rd:
            need, why = max(need, 2), "valu sgpr->valu"
        if b.kind == "salu" and ws & b.rd:
            need, why = max(need, 1), "valu sgpr->salu(pad)"
    if a.kind == "mfma":
        p8 = "32x32x16" in a.mn
        big = 12 if p8 else 8
        if b.kind == "mfma":
            if a.wr & b.srcab:
                need, why = big, "mfma D->AB"
            if a.wr & b.srcc and a.wr != b.srcc:
                need, why = max(need, 10 if p8 else 6), "mfma D->C partial"
            if a.wr & b.wr and a.wr != b.srcc:
                need, why = max(need, 10 if p8 else 6), "mfma D->D waw"
        elif b.kind in ("valu", "lds", "vmem"):
            if b.kind == "valu" and a.srcc & b.wr:
                need, why = (7 if p8 else 3), "mfma C war"
            if a.wr & (b.rd | b.wr):
                need, why = big, "mfma D->valu/mem"
    if a.kind == "salu" and ("s", 124) in a.wr and b.kind == "vmem" and ("s", 124) in b.rd:
        need, why = max(need, 1), "m0->dma"
    if a.kind == "vmem" and "store" in a.mn and ("x4" in a.mn or "x3" in a.mn):
        data = regs_of(a.text.split(None, 1)[1].split(",")[0]) if a.mn.startswith("buffer") else set()
        if data & b.wr and b.kind in ("valu", "lds", "vmem", "mfma"):
            need, why = max(need, 2), "store data war"
    return need, why


def missing_states(seq, b):
    dist, worst = 0, 0
    for a in reversed(seq):
        if dist >= 13:
            break
        if a.kind != "label":
            need, _ = need_between(a, b)
            worst = max(worst, need - dist)
            dist += a.nops
    return worst


def check_hazards(seq, name=""):
    probs = []
    for j, b in enumerate(seq):
        if b.kind == "label":
            continue
        dist = 0
        for i in range(j - 1, -1, -1):
            if dist >= 13:
                break
            a = seq[i]
            if a.kind == "label":
                continue
            need, why = need_between(a, b)
            if dist < need:
                probs.append(f"{name}: {why} need {need} have {dist}: [{a.text.strip()}] -> [{b.text.strip()}]")
            dist += a.nops
    return probs


class Gen:
    def __init__(self):
        self.seq = []
        self.lq = []
        self.vq = []
        self.max_lq = 0
        self.auto = True
        self.padded = 0

    def e(self, text):
        ins = Ins(text)
        ms = missing_states(self.seq, ins) if self.auto else 0
        if ms > 0:
            self.seq.append(Ins(f"s_nop {ms-1}"))
            self.padded += ms
        self.seq.append(ins)
        return ms

    def lines(self, text):
        for ln in text.strip().splitlines():
            ln = ln.strip()
            if ln:
                self.e(ln)

    def label(self, name):
        self.seq.append(Ins(name + ":"))

    def ds(self, text, tag=None):
        self.e(text)
        self.lq.append(tag)
        self.max_lq = max(self.max_lq, len(self.lq))

    def vm(self, text, tag=None):
        self.e(text)
        self.vq.append(tag)

    def _need(self, q, tags):
        idx = -1
        tags = set(tags)
        for i, t in enumerate(q):
            if t in tags:
                idx = i
        return idx

    def wait(self, ltags=(), vtags=(), lall=False, vall=False):
        li = len(self.lq) - 1 if lall else self._need(self.lq, ltags)
        vi = len(self.vq) - 1 if vall else self._need(self.vq, vtags)
        parts = []
        if vi >= 0:
            n = min(len(self.vq) - 1 - vi, 63)
            parts.append(f"vmcnt({n})")
            self.vq = self.vq[len(self.vq) - n:] if n else []
        if li >= 0:
            n = min(len(self.lq) - 1 - li, 15)
            parts.append(f"lgkmcnt({n})")
            self.lq = self.lq[len(self.lq) - n:] if n else []
        if parts:
            self.e("s_waitcnt " + " ".join(parts))
            return True
        return False

    def would_wait(self, ltags=(), vtags=()):
        return self._need(self.lq, ltags) >= 0 or self._need(self.vq, vtags) >= 0

    def text(self, seq=None):
        out = []
        for i in (self.seq if seq is None else seq):
            out.append(i.text if i.kind == "label" else "    " + i.text)
        return "\n".join(out) + "\n"


class Op:
    def __init__(self, text, kind="v", tag=None, lneed=(), vneed=(), early=-10**9, dead=10**9, cost=None):
        self.text = text
        self.kind = kind
        self.tag = tag
        self.lneed = tuple(lneed)
        self.vneed = tuple(vneed)
        self.early = early
        self.dead = dead
        self.cost = cost if cost is not None else Ins(text).cost


def emit_op(g, op):
    c = 0
    p0 = g.padded
    if op.lneed or op.vneed:
        if g.wait(op.lneed, op.vneed):
            c += 4
    if op.kind == "ds":
        g.ds(op.text, op.tag)
    elif op.kind == "vm":
        g.vm(op.text, op.tag)
    elif op.kind == "label":
        g.label(op.text)
    else:
        g.e(op.text)
    return c + op.cost + 4 * (g.padded - p0)


def schedule(g, mfmas, fixed, tail, queue, budget=24, start=-1, marks=None, stats=None):
    qi = 0
    n = len(mfmas)
    for i in range(start, n):
        if marks is not None:
            marks[i] = len(g.seq)
        if i >= 0:
            emit_op(g, mfmas[i])
        used = 0
        for op in fixed.get(i, []):
            used += emit_op(g, op)
        reserve = sum(op.cost for op in tail.get(i, []))
        nxt = mfmas[i + 1] if i + 1 < n else None
        if nxt is not None and g.would_wait(nxt.lneed, nxt.vneed):
            reserve += 4
        while qi < len(queue):
            op = queue[qi]
            must = any(queue[k].dead <= i + 1 for k in range(qi, min(len(queue), qi + 400)))
            if op.early > i:
                if must and any(queue[k].dead <= i + 1 for k in range(qi, min(len(queue), qi + 400))) and op.dead <= i + 1:
                    raise RuntimeError(f"op {op.text} early {op.early} > gap {i} but deadline {op.dead}")
                if must:
                    raise RuntimeError(f"queue order conflict at gap {i}: {op.text} early {op.early}")
                break
            extra = 4 if g.would_wait(op.lneed, op.vneed) else 0
            if not must and used + op.cost + extra + reserve > budget:
                break
            if not must and missing_states(g.seq, Ins(op.text)) > (1 if extra else 0):
                break
            used += emit_op(g, op)
            qi += 1
        for op in tail.get(i, []):
            used += emit_op(g, op)
        if stats is not None:
            stats[i] = used + (4 if (nxt is not None and g.would_wait(nxt.lneed, nxt.vneed)) else 0)
    while qi < len(queue):
        emit_op(g, queue[qi])
        qi += 1
    if marks is not None:
        marks[n] = len(g.seq)


def descriptor(name, nv, acc, nsgpr=102):
    return f"""
.section .rodata,"a"
.p2align 6
.amdhsa_kernel {name}
  .amdhsa_next_free_vgpr {nv}
  .amdhsa_next_free_sgpr {nsgpr}
  .amdhsa_accum_offset {acc}
  .amdhsa_group_segment_fixed_size 0
  .amdhsa_kernarg_size 112
  .amdhsa_user_sgpr_count 2
  .amdhsa_user_sgpr_kernarg_segment_ptr 1
  .amdhsa_system_sgpr_workgroup_id_x 1
.end_amdhsa_kernel
.text
"""


def header(name):
    return f""".globl {name}
.p2align 8
.type {name},@function
{name}:
"""
```

```python
import struct
from collections import defaultdict
from asmlib import *
from ksmall import srd, ARG, XH_OFF, TAB_OFF, PART_OFF, ACT_BYTES

MF = "v_mfma_f32_32x32x16_bf16"
HEAD = 60
THRESH = 0x5D800000
CSCALE = struct.unpack("<I", struct.pack("<f", 1.4426950408889634 * 128 ** -0.5))[0]

AK, AV, DK, DV, DWO, AWO, STV = 8, 16, 20, 24, 25, 29, 33
LR, TMP, MX = 34, 38, 46
SB, PB, CI, QB = 48, 112, 144, 176
DWQ, AWQ, XHV, TBV = 240, 244, 252, 253
UT, TB, HB = 38, 176, 208
RING, NRING = 128, 16
TAB_LDS = 131072
LDS_BYTES = TAB_LDS + 5120


def vr(b, n):
    return f"v[{b}:{b+n-1}]"


def ar(b, n):
    return f"a[{b}:{b+n-1}]"


def S_(b, j):
    return SB + 32 * b + 16 * j


def P_(b, j):
    return PB + 16 * b + 8 * j


def xraw(s):
    return 4 * s if s < 32 else 192 + 4 * (s - 32)


class Timeline:
    def __init__(self):
        self.m = []
        self.fixed = defaultdict(list)
        self.tail = defaultdict(list)
        self.q = []
        self.ring_i = 0
        self.ring_last = [-10**9] * NRING
        self.first_read = {}

    def frag(self, reads, gaps, bundle, last_use, tag):
        e = self.ring_i % NRING
        self.ring_i += 1
        assert self.ring_last[e] <= min(gaps), (self.ring_last[e], gaps, tag)
        self.ring_last[e] = last_use
        base = RING + 4 * e
        for k, (rd, gp) in enumerate(zip(reads, gaps)):
            dst = ar(base, 4) if len(reads) == 1 else ar(base + 2 * k, 2)
            self.fixed[gp].append(Op(rd.format(dst), "ds", tag=f"{tag}.{k}"))
            self.first_read[bundle] = min(self.first_read.get(bundle, 10**9), gp)
        return ar(base, 4), [f"{tag}.{k}" for k in range(len(reads))]

    def mfma(self, d, a, b, c, lneed=()):
        self.m.append(Op(f"{MF} {d}, {a}, {b}, {c}", "m", lneed=lneed))
        return len(self.m) - 1

    def v(self, text, early, dead, **kw):
        self.q.append(Op(text, "v", early=early, dead=dead, **kw))


def dma_ops(B):
    slot = B % 4
    tag = f"dma{B}"
    groups = []
    if B < 9:
        for jh in range(2):
            grp = [Op(f"s_add_u32 m0, s47, {jh*65536 + slot*16384}", "s"),
                   Op(f"s_mov_b32 s50, {B*64*8192 + jh*256}", "s")]
            grp += [Op(f"buffer_load_dwordx4 v{DWQ+j}, s[16:19], s50 offen offset:{j*1024} lds", "vm", tag=tag) for j in range(4)]
            groups.append(grp)
    elif B < 42:
        n = B - 9
        if n >= 1:
            grp = [Op(f"s_add_u32 m0, s47, {65536 + slot*16384}", "s")]
            grp += [Op(f"buffer_load_dwordx4 v{DV}, s[12:15], s49 offen offset:{j*1024} lds", "vm", tag=tag) for j in range(4)]
            grp += [Op("s_add_u32 s49, s49, 0x4000", "s")]
            groups.append(grp)
        if n <= 31:
            grp = [Op(f"s_add_u32 m0, s47, {slot*16384}", "s")]
            grp += [Op(f"buffer_load_dwordx4 v{DK+j}, s[8:11], s48 offen offset:{j*1024} lds", "vm", tag=tag) for j in range(4)]
            grp += [Op("s_add_u32 s48, s48, 0x4000", "s")]
            groups.append(grp)
    elif B < 51:
        i = B - 42
        for jh in range(2):
            grp = [Op(f"s_add_u32 m0, s47, {jh*65536 + slot*16384}", "s"),
                   Op(f"s_mov_b32 s50, {jh*128*1152 + i*128}", "s")]
            grp += [Op(f"buffer_load_dwordx4 v{DWO+j}, s[20:23], s50 offen offset:{j*1024} lds", "vm", tag=tag) for j in range(4)]
            groups.append(grp)
    return groups


def prologue(g, name):
    g.e("s_cmp_ge_u32 s2, 256")
    g.e(f"s_cbranch_scc1 {name}_end")
    g.e(f"s_load_dwordx4 s[4:7], s[0:1], {ARG['k']}")
    g.e(f"s_load_dwordx4 s[36:39], s[0:1], {ARG['wq']}")
    g.e(f"s_load_dwordx2 s[40:41], s[0:1], {ARG['ws']}")
    g.lines("""
    v_lshrrev_b32 v1, 6, v0
    v_and_b32 v2, 63, v0
    s_and_b32 s44, s2, 7
    s_lshl_b32 s44, s44, 1
    v_readfirstlane_b32 s46, v1
    s_bfe_u32 s45, s2, 0x10003
    s_add_u32 s44, s44, s45
    s_lshr_b32 s45, s2, 4
    s_mov_b32 s53, 0xffff0000
    v_lshrrev_b32 v3, 4, v2
    v_and_b32 v4, 15, v2
    v_lshlrev_b32 v5, 2, v3
    v_xor_b32 v5, v5, v4
    v_lshlrev_b32 v5, 4, v5
    s_lshl_b32 s47, s46, 12
    s_lshl_b32 s57, s46, 17
    """)
    g.e(f"v_lshl_add_u32 v{DWQ}, v3, 13, v5")
    g.e(f"v_add_u32 v{DWQ}, s57, v{DWQ}")
    for j in range(1, 4):
        g.e(f"v_add_u32 v{DWQ+j}, {j*(32768-1024)}, v{DWQ}")
    g.e(f"v_lshlrev_b32 v{XHV}, 4, v2")
    g.e("s_waitcnt lgkmcnt(0)")
    g.e("s_lshl_b32 s58, s44, 9")
    srd(g, 16, 36, "s58", 576 * 8192 - 15 * 512)
    srd(g, 28, 40, TAB_OFF, 5120)
    g.e("s_lshl_b32 s58, s45, 2")
    g.e("s_add_u32 s58, s58, s46")
    g.e("s_mul_i32 s58, s58, 36864")
    if XH_OFF:
        g.e(f"s_add_u32 s58, s58, {XH_OFF}")
    srd(g, 24, 40, "s58", 36864)
    for grp in dma_ops(0):
        for op in grp:
            emit_op(g, op)
    g.e("s_lshl_b32 s58, s46, 10")
    g.e(f"s_add_u32 m0, s58, {TAB_LDS}")
    g.e("s_movk_i32 s59, 0x1000")
    g.vm(f"buffer_load_dwordx4 v{XHV}, s[28:31], s58 offen lds", "dma0")
    g.e(f"s_mov_b32 m0, {TAB_LDS + 4096}")
    g.e("s_nop 0")
    g.vm(f"buffer_load_dwordx4 v{XHV}, s[28:31], s59 offen lds", "dma0")

    def xload(s):
        if s % 4 == 0:
            g.e(f"s_mov_b32 s59, {s*1024}")
        g.vm(f"buffer_load_dwordx4 {ar(xraw(s), 4)}, v{XHV}, s[24:27], s59 offen offset:{(s%4)*1024}", f"xr{s}")

    for s in range(8):
        xload(s)
    for grp in dma_ops(1):
        for op in grp:
            emit_op(g, op)
    for s in range(8, 36):
        xload(s)
    for grp in dma_ops(2):
        for op in grp:
            emit_op(g, op)
    g.e("s_lshl_b32 s58, s44, 19")
    srd(g, 8, 4, "s58", 524288)
    srd(g, 12, 6, "s58", 524288)
    g.e(f"s_mul_i32 s58, s44, {256*1152}")
    srd(g, 20, 38, "s58", 256 * 1152)
    g.e(f"s_mul_i32 s58, s44, {ACT_BYTES}")
    g.e(f"s_mul_i32 s59, s45, {16*9216}")
    g.e("s_add_u32 s58, s58, s59")
    g.e(f"s_add_u32 s58, s58, {PART_OFF}")
    srd(g, 32, 40, "s58", 16 * 9216)
    g.lines(f"""
    s_mov_b32 s48, 0
    s_mov_b32 s49, 0
    s_mov_b32 s51, 6
    s_mov_b32 s54, {THRESH:#x}
    s_mov_b32 s55, {CSCALE:#x}
    v_lshrrev_b32 v1, 5, v2
    v_bfe_u32 v6, v2, 2, 2
    v_and_b32 v7, 3, v2
    v_bfe_u32 v46, v2, 4, 1
    v_lshlrev_b32 v46, 5, v46
    v_lshl_add_u32 v47, v7, 3, v46
    v_lshrrev_b32 v38, 1, v7
    v_and_b32 v39, 1, v7
    v_lshl_add_u32 v38, v39, 1, v38
    v_lshl_add_u32 v46, v38, 3, v46
    v_and_b32 v40, 31, v2
    """)
    for s in range(8):
        g.e(f"v_add_u32 v41, {2*s}, v1")
        g.e("v_xor_b32 v41, v41, v4")
        g.e("v_lshlrev_b32 v41, 4, v41")
        g.e(f"v_lshl_add_u32 v{AK+s}, v40, 8, v41")
    g.e("v_lshl_add_u32 v42, v1, 2, v6")
    g.e("v_lshl_add_u32 v43, v1, 3, v6")
    for db in range(4):
        g.e(f"v_xor_b32 v41, {db}, v6")
        g.e("v_lshlrev_b32 v41, 6, v41")
        g.e("v_lshl_add_u32 v44, v42, 8, v41")
        g.e(f"v_add_u32 v{AV+db}, v44, v47")
        g.e(f"v_add_u32 v{AV+db}, 0x10000, v{AV+db}")
        g.e("v_lshl_add_u32 v44, v43, 8, v41")
        g.e(f"v_add_u32 v{AWQ+db}, v44, v46")
        g.e(f"v_add_u32 v{AWQ+4+db}, 0x10000, v{AWQ+db}")
    g.e("v_lshrrev_b32 v45, 1, v6")
    for nbl in range(2):
        g.e(f"v_xor_b32 v41, {nbl}, v45")
        g.e("v_lshlrev_b32 v41, 6, v41")
        g.e("v_lshl_add_u32 v44, v42, 7, v41")
        g.e(f"v_add_u32 v{AWO+nbl}, v44, v46")
        g.e(f"v_add_u32 v{AWO+2+nbl}, 0x10000, v{AWO+nbl}")
    for j in range(4):
        g.e(f"v_add_u32 v41, {4*j}, v3")
        g.e("v_xor_b32 v41, v41, v4")
        g.e("v_lshlrev_b32 v41, 4, v41")
        g.e("v_lshl_add_u32 v41, v3, 8, v41")
        g.e(f"v_add_u32 v{DK+j}, s47, v41")
    g.e(f"v_lshl_add_u32 v{DV}, v3, 8, v5")
    g.e(f"v_add_u32 v{DV}, s47, v{DV}")
    g.lines(f"""
    v_lshrrev_b32 v41, 3, v2
    s_lshl_b32 s58, s46, 5
    v_add_u32 v41, s58, v41
    v_mul_u32_u24 v41, 1152, v41
    v_and_b32 v44, 7, v2
    v_bfe_u32 v45, v2, 4, 1
    v_lshlrev_b32 v45, 2, v45
    v_xor_b32 v45, v45, v44
    v_lshl_add_u32 v{DWO}, v45, 4, v41
    """)
    for j in range(1, 4):
        g.e(f"v_add_u32 v{DWO+j}, {j*(9216-1024)}, v{DWO}")
    g.lines(f"""
    v_lshrrev_b32 v41, 3, v40
    s_lshl_b32 s58, s46, 2
    v_add_u32 v41, s58, v41
    v_mul_u32_u24 v41, 9216, v41
    v_lshl_add_u32 v41, v1, 7, v41
    v_lshl_add_u32 v{STV}, v44, 4, v41
    v_lshlrev_b32 v{TBV}, 6, v1
    v_add_u32 v{TBV}, {TAB_LDS}, v{TBV}
    v_mov_b32 v{LR+1}, 0
    v_mov_b32 v{LR+3}, 0
    """)


def rare_path(g, name, b, sites):
    g.label(f"{name}_rare{b}")
    g.e("s_nop 15")
    for j in range(2):
        s, s2, p = S_(b, j), S_(1 - b, j), P_(b, j)
        lo, ln = LR + 2 * j + (1 - b), LR + 2 * j + b
        g.e(f"v_max3_f32 v{MX}, v{s}, v{s+1}, v{s+2}")
        for r in range(3, 15, 2):
            g.e(f"v_max3_f32 v{MX}, v{MX}, v{s+r}, v{s+r+1}")
        g.e(f"v_max_f32 v{MX}, v{MX}, v{s+15}")
        g.e(f"v_mov_b32 v{MX+1}, v{MX}")
        g.e("s_nop 1")
        g.e(f"v_permlane32_swap_b32 v{MX}, v{MX+1}")
        g.e("s_nop 1")
        g.e(f"v_max_f32 v{MX}, v{MX}, v{MX+1}")
        g.e(f"v_add_f32 v{MX}, {float(HEAD):.1f}, v{MX}".replace("60.0", "0x42700000"))
        g.e(f"v_max_f32 v{MX}, 0, v{MX}")
        g.e(f"v_ceil_f32 v{MX}, v{MX}")
        g.e(f"v_cvt_i32_f32 v{MX+1}, v{MX}")
        g.e(f"v_sub_u32 v{MX+1}, 0, v{MX+1}")
        g.e(f"v_ldexp_f32 v{ln}, v{lo}, v{MX+1}")
        for r in range(16):
            g.e(f"v_sub_f32 v{CI+16*j+r}, v{CI+16*j+r}, v{MX}")
            g.e(f"v_sub_f32 v{s2+r}, v{s2+r}, v{MX}")
            g.e(f"v_sub_f32 v{s+r}, v{s+r}, v{MX}")
        for r in range(16):
            g.e(f"v_exp_f32 v{s+r}, v{s+r}")
        g.e("s_nop 0")
        for r in range(16):
            g.e(f"v_add_f32 v{ln}, v{ln}, v{s+r}")
        for r in range(8):
            g.e(f"v_cvt_pk_bf16_f32 v{p+r}, v{s+2*r}, v{s+2*r+1}")
        for r0 in range(0, 64, 8):
            for k in range(8):
                g.e(f"v_accvgpr_read_b32 v{TMP+k}, a{64*j+r0+k}")
            for k in range(8):
                g.e(f"v_ldexp_f32 v{TMP+k}, v{TMP+k}, v{MX+1}")
            for k in range(8):
                g.e(f"v_accvgpr_write_b32 a{64*j+r0+k}, v{TMP+k}")
    g.e("s_nop 1")
    for sid in sites[:-1]:
        g.e(f"s_cmp_eq_u32 s52, {sid}")
        g.e(f"s_cbranch_scc1 {name}_ret{sid}")
    g.e(f"s_branch {name}_ret{sites[-1]}")


def gen_k2(name, debug=None):
    g = Gen()
    if debug:
        g.e("s_memrealtime s[92:93]")
        g.e("s_memtime s[64:65]")
    prologue(g, name)
    T = Timeline()
    LA = 8
    pstart = {}

    for s in range(36):
        B, sl = s // 4, s % 4
        if sl == 0:
            pstart[B] = len(T.m)
        tbb = TB + 16 * (s % 2)
        hb = HB + 4 * (s % 3)
        for k in range(4):
            gp = max(-1, 8 * (s - 2) + k)
            T.fixed[gp].append(Op(f"ds_read_b128 {vr(tbb+4*k, 4)}, v{TBV} offset:{s*128+16*k}", "ds", tag=f"tb{s}.{k}"))
            T.first_read[0] = min(T.first_read.get(0, 10**9), gp)
        e0, d0 = max(-1, 8 * (s - 2) + 4), max(0, 8 * (s - 1) + 5)
        for i in range(4):
            T.v(f"v_accvgpr_read_b32 v{UT+2*i+1}, a{xraw(s)+i}", e0, d0, vneed=[f"xr{s}"])
        for i in range(4):
            T.v(f"v_lshlrev_b32 v{UT+2*i}, 16, v{UT+2*i+1}", e0, d0)
            T.v(f"v_and_b32 v{UT+2*i+1}, s53, v{UT+2*i+1}", e0, d0)
        for i in range(8):
            T.v(f"v_fma_f32 v{UT+i}, v{UT+i}, v{tbb+i}, v{tbb+8+i}", e0, d0, lneed=[f"tb{s}.{k}" for k in range(4)])
        for i in range(4):
            T.v(f"v_cvt_pk_bf16_f32 v{hb+i}, v{UT+2*i}, v{UT+2*i+1}", e0, d0)
        pend = []
        for jh in range(2):
            for db in range(4):
                idx = len(T.m)
                gp = max(-1, idx - LA)
                off = (B % 4) * 16384 + sl * 4096
                rds = [f"ds_read_b64_tr_b16 {{}}, v{AWQ+4*jh+db} offset:{off+u*1024}" for u in range(2)]
                a, tags = T.frag(rds, [gp, gp], B, idx, f"wq{s}.{jh}.{db}")
                pend.append((a, tags))
        for jh in range(2):
            for db in range(4):
                i8 = 4 * jh + db
                a, _ = pend[i8]
                need = [t for k in range(i8, i8 + 4) for t in pend[k][1]] if db == 0 else []
                acc = SB + 64 * jh + 16 * db
                T.mfma(vr(acc, 16), a, vr(hb, 4), "0" if s == 0 else vr(acc, 16), need)
    n1 = len(T.m)

    def kread(t, s, gp, last):
        n = t // 2
        off = ((9 + n) % 4) * 16384 + (t % 2) * 8192
        return T.frag([f"ds_read_b128 {{}}, v{AK+s} offset:{off}"], [gp], 9 + n, last, f"k{t}.{s}")

    def vread(t, gi, gps, last):
        n = t // 2 + 1
        db, tt = gi % 4, gi // 4
        off = ((9 + n) % 4) * 16384 + (t % 2) * 8192 + tt * 4096
        rds = [f"ds_read_b64_tr_b16 {{}}, v{AV+db} offset:{off+u*2048}" for u in range(2)]
        return T.frag(rds, gps, 9 + n, last, f"v{t}.{gi}")

    q0 = n1
    for jh in range(2):
        for db in range(4):
            acc = SB + 64 * jh + 16 * db
            fin = n1 - 8 + 4 * jh + db
            for a in range(2):
                dead = q0 + 8 * jh + 2 * db + a - 1
                for r in range(8):
                    T.v(f"v_mul_f32 v{acc+8*a+r}, s55, v{acc+8*a+r}", fin + 3, dead)
                for r in range(4):
                    T.v(f"v_cvt_pk_bf16_f32 v{QB+32*jh+4*(2*db+a)+r}, v{acc+8*a+2*r}, v{acc+8*a+2*r+1}", fin + 3, dead)

    pstart[9] = len(T.m)
    for t in range(2):
        base = len(T.m)
        fr = [kread(t, s, base + s - LA, base + 8 + s) for s in range(8)]
        for j in range(2):
            for s in range(8):
                d = vr(S_(t, j), 16)
                c = d if s else ("0" if t == 0 else vr(CI + 16 * j, 16))
                need = fr[s][1] + (fr[s + 1][1] if s % 2 == 0 else []) if j == 0 else []
                T.mfma(d, fr[s][0], vr(QB + 32 * j + 4 * s, 4), c, need)
    b0, b1 = q0, q0 + 16
    for j in range(2):
        s = S_(0, j)
        e0, d0 = b0 + 8 * j + 7 + 3, b1 + 8 * j - 1
        if j == 1:
            e0 = b1 + 1
        mx = MX if j == 0 else TMP + 6
        T.v(f"v_max3_f32 v{mx}, v{s}, v{s+1}, v{s+2}", e0, d0)
        for r in range(3, 15, 2):
            T.v(f"v_max3_f32 v{mx}, v{mx}, v{s+r}, v{s+r+1}", e0, d0)
        T.v(f"v_max_f32 v{mx}, v{mx}, v{s+15}", e0, d0)
        T.v(f"v_mov_b32 v{mx+1}, v{mx}", e0, d0)
        T.v("s_nop 1", e0, d0)
        T.v(f"v_permlane32_swap_b32 v{mx}, v{mx+1}", e0, d0)
        T.v("s_nop 1", e0, d0)
        T.v(f"v_max_f32 v{mx}, v{mx}, v{mx+1}", e0, d0)
        T.v(f"v_add_f32 v{mx}, 0x42700000, v{mx}", e0, d0)
        T.v(f"v_ceil_f32 v{mx}, v{mx}", e0, d0)
        for r in range(16):
            T.v(f"v_sub_f32 v{CI+16*j+r}, 0, v{mx}", e0, d0)
    endit0 = b1 + 15
    for j in range(2):
        for r in range(16):
            T.v(f"v_add_f32 v{S_(0, j)+r}, v{S_(0, j)+r}, v{CI+16*j}", b1 + 1, endit0)

    sites = {0: [], 1: []}

    def softmax(t, e0, last, sid):
        b = t % 2
        ops = []
        for k in range(32):
            j, r = k // 16, k % 16
            ops.append(("e", k, f"v_exp_f32 v{TMP+k%8}, v{S_(b, j)+r}"))
        order = []
        for k in range(32):
            order.append(ops[k][2])
            if k >= 1:
                kk = k - 1
                j, r = kk // 16, kk % 16
                src = LR + 2 * j + (1 - b if r == 0 else b)
                order.append(f"v_add_f32 v{LR+2*j+b}, v{src}, v{TMP+kk%8}")
                if kk % 2 == 1:
                    order.append(f"v_cvt_pk_bf16_f32 v{P_(b, j)+r//2}, v{TMP+(kk-1)%8}, v{TMP+kk%8}")
        order.append(f"v_cvt_pk_bf16_f32 v{P_(b, 1)+7}, v{TMP+30%8}, v{TMP+31%8}")
        order.append(f"v_add_f32 v{LR+2+b}, v{LR+2+b}, v{TMP+31%8}")
        order.append(f"v_max_f32 v{MX}, v{LR+b}, v{LR+2+b}")
        order.append(f"v_cmp_lt_f32 vcc, s54, v{MX}")
        for o in order:
            T.v(o, e0, last + 1)
        T.fixed[last - 3].append(Op(f"s_movk_i32 s52, {sid}", "s"))
        T.tail[last].append(Op(f"s_cbranch_vccnz {name}_rare{b}", "s"))
        T.tail[last].append(Op(f"{name}_ret{sid}", "label", cost=0))
        if sid not in sites[b]:
            sites[b].append(sid)

    softmax(0, b1 + 1, endit0, 100)

    itbase = {}
    for t in range(1, 63):
        base = len(T.m)
        itbase[t] = base
        if t % 2 == 1:
            pstart[9 + (t + 1) // 2] = base
        for gi in range(8):
            i0 = base + 4 * gi
            kf = kread(t + 1, gi, i0 - 9, i0 + 1)
            vf = vread(t - 1, gi, [i0 - 8, i0 - 7], i0 + 3)
            db, tt = gi % 4, gi // 4
            for j in range(2):
                d = vr(S_((t + 1) % 2, j), 16)
                T.mfma(d, kf[0], vr(QB + 32 * j + 4 * gi, 4), d if gi else vr(CI + 16 * j, 16), kf[1] + vf[1] if j == 0 else [])
            for j in range(2):
                d = ar(64 * j + 16 * db, 16)
                T.mfma(d, vf[0], vr(P_((t - 1) % 2, j) + 4 * tt, 4), "0" if (t == 1 and tt == 0) else d)
        n = (t + 1) // 2
        inloop = 2 <= n <= 29
        sid = ((t - 3) % 8) if inloop else 100 + t
        softmax(t, base, base + 31, sid)
        if inloop and (t - 3) % 8 == 7:
            T.tail[base + 31].append(Op("s_sub_u32 s51, s51, 1", "s"))
            T.tail[base + 31].append(Op(f"s_cbranch_scc0 {name}_loop", "s"))

    base = len(T.m)
    itbase[63] = base
    pstart[41] = base
    for gi in range(8):
        i0 = base + 2 * gi
        vf = vread(62, gi, [i0 - 8, i0 - 7], i0 + 1)
        db, tt = gi % 4, gi // 4
        for j in range(2):
            d = ar(64 * j + 16 * db, 16)
            T.mfma(d, vf[0], vr(P_(0, j) + 4 * tt, 4), d, vf[1] if j == 0 else [])
    softmax(63, base, base + 15, 163)
    base = len(T.m)
    b64 = base
    fr = [vread(63, gi, [base + gi - LA, base + gi - LA], base + 8 + gi) for gi in range(8)]
    for j in range(2):
        for gi in range(8):
            db, tt = gi % 4, gi // 4
            d = ar(64 * j + 16 * db, 16)
            need = fr[gi][1] + (fr[gi + 1][1] if gi % 2 == 0 else []) if j == 0 else []
            T.mfma(d, fr[gi][0], vr(P_(1, j) + 4 * tt, 4), d, need)
    p3 = len(T.m)
    INV = CI
    for j in range(2):
        l = LR + 2 * j + 1
        T.v(f"v_mov_b32 v{INV+2+j}, v{l}", b64, p3)
    T.v("s_nop 1", b64, p3)
    for j in range(2):
        T.v(f"v_permlane32_swap_b32 v{LR+2*j+1}, v{INV+2+j}", b64, p3)
    T.v("s_nop 1", b64, p3)
    for j in range(2):
        T.v(f"v_add_f32 v{INV+j}, v{LR+2*j+1}, v{INV+2+j}", b64, p3)
    for j in range(2):
        T.v(f"v_rcp_f32 v{INV+j}, v{INV+j}", b64, p3)
    T.v("s_nop 0", b64, p3)
    NT = CI + 8
    for jh in range(2):
        for ks in range(8):
            db, a = ks // 2, ks % 2
            e0 = b64 + 8 * jh + 4 + db + 3
            dead = p3 + 2 * (8 * jh + ks) - 1
            nt = NT + 8 * (ks % 2)
            for r in range(8):
                T.v(f"v_accvgpr_read_b32 v{nt+r}, a{64*jh+16*db+8*a+r}", e0, dead)
            for r in range(8):
                T.v(f"v_mul_f32 v{nt+r}, v{nt+r}, v{INV+jh}", e0, dead)
            for r in range(4):
                T.v(f"v_cvt_pk_bf16_f32 v{QB+32*jh+4*ks+r}, v{nt+2*r}, v{nt+2*r+1}", e0, dead)

    final_tail = []
    for i in range(9):
        B = 42 + i
        pstart[B] = len(T.m)
        pend = []
        for k in range(32):
            ka, nbl = k // 2, k % 2
            jh, ks = ka // 8, ka % 8
            idx = pstart[B] + k
            off = (B % 4) * 16384 + ks * 2048
            rds = [f"ds_read_b64_tr_b16 {{}}, v{AWO+2*jh+nbl} offset:{off+u*1024}" for u in range(2)]
            pend.append(T.frag(rds, [idx - LA, idx - LA], B, idx, f"wo{i}.{k}"))
        for k in range(32):
            ka, nbl = k // 2, k % 2
            jh, ks = ka // 8, ka % 8
            acc = SB + 32 * (i % 2) + 16 * nbl
            need = [t for kk in range(k, k + 4) for t in pend[kk][1]] if k % 4 == 0 else []
            T.mfma(vr(acc, 16), pend[k][0], vr(QB + 32 * jh + 4 * ks, 4), "0" if ka == 0 else vr(acc, 16), need)
        E = len(T.m) - 1
        pk = PB + 16 * (i % 2)
        cv, st = [], []
        for nbl in range(2):
            acc = SB + 32 * (i % 2) + 16 * nbl
            for r in range(8):
                cv.append(f"v_cvt_pk_bf16_f32 v{pk+8*nbl+r}, v{acc+2*r}, v{acc+2*r+1}")
            for a in range(2):
                st.append(f"buffer_store_dwordx4 {vr(pk+8*nbl+4*a, 4)}, v{STV}, s[32:35], s56 offen offset:{(2*nbl+a)*256}")
        if i < 8:
            for c in cv:
                T.v(c, E + 4, E + 12)
            T.fixed[E + 11].append(Op(f"s_movk_i32 s56, {i*1024}", "s"))
            for k, s_ in enumerate(st):
                T.fixed[E + 12 + 2 * k].append(Op(s_, "vm", tag="st"))
        else:
            final_tail = ["s_nop 11", f"s_movk_i32 s56, {i*1024}"] + cv[:4] + [st[0]] + cv[4:8] + [st[1]] + cv[8:12] + [st[2]] + cv[12:] + [st[3]]

    bar = {}
    for B in range(51):
        gp = max(-1, T.first_read[B] - 1)
        bar[B] = gp
        op = Op("s_barrier", "s", vneed=[f"dma{B}"], cost=20)
        if B == 0:
            T.fixed[gp].insert(0, op)
        else:
            T.fixed[gp].append(op)
    for B in range(51):
        tgt = B + 2 if B >= 2 else (3 if B == 0 else None)
        if tgt is None or tgt > 50:
            continue
        span = bar.get(B + 1, bar[B] + 32) - bar[B]
        step = 4 if span >= 48 else (2 if span >= 24 else 1)
        gp = bar[B] + (4 if step == 4 else 2)
        if B == 0:
            gp, step = 1, 2
        for grp in dma_ops(tgt):
            for op in grp:
                if op.kind == "vm":
                    T.fixed[gp].append(op)
                    gp += step
                else:
                    T.fixed[gp - 1].append(op)
    T.tail[-1].append(Op("s_nop 1", "s"))
    if debug:
        pts = [-1, 0, pstart[3], pstart[6], n1 - 1, pstart[10], pstart[11] - 1, pstart[39], pstart[41], p3, pstart[46], len(T.m) - 1]
        for k, gp in enumerate(pts):
            T.fixed[gp].append(Op(f"s_memtime s[{66+2*k}:{67+2*k}]", "s"))
    marks, stats = {}, {}
    schedule(g, T.m, T.fixed, T.tail, T.q, marks=marks, stats=stats)
    for ln in final_tail:
        if ln.startswith("buffer"):
            g.vm(ln)
        else:
            g.e(ln)
    if debug:
        g.e("s_waitcnt vmcnt(0)")
        g.e("s_memtime s[90:91]")
        g.e("s_memrealtime s[94:95]")
        g.e("s_waitcnt lgkmcnt(0)")
        srd(g, 8, 40, 0x8000000, 0x100000)
        for k in range(16):
            g.e(f"v_mov_b32 v{48+k}, s{64+2*k}")
        g.e("s_lshl_b32 s58, s2, 2")
        g.e("s_add_u32 s58, s58, s46")
        g.e("s_lshl_b32 s58, s58, 6")
        g.e("v_mov_b32 v1, s58")
        for k in range(4):
            g.vm(f"buffer_store_dwordx4 v[{48+4*k}:{51+4*k}], v1, s[8:11], 0 offen offset:{16*k}")
    g.label(f"{name}_end")
    g.e("s_endpgm")
    linear = list(g.seq)
    probs = check_hazards(linear, name)

    blocks = [pstart[9 + n] for n in range(2, 31, 4)]
    segs = [linear[marks[blocks[k]]:marks[blocks[k + 1]]] for k in range(7)]
    ref = [i.text for i in segs[0]]
    for k in range(1, 7):
        assert [i.text for i in segs[k]] == ref, f"loop block {k} differs"
    out = linear[:marks[blocks[0]]] + [Ins(".p2align 4"), Ins(f"{name}_loop:")] + segs[0] + linear[marks[blocks[7]]:]
    r = Gen()
    for b in range(2):
        rare_path(r, name, b, sites[b])
    probs += check_hazards(r.seq, name + "_rare")
    text = g.text(out) + r.text()
    over = {k: v for k, v in stats.items() if v > 24}
    info = dict(n_mfma=len(T.m), max_lq=g.max_lq, est_cycles=sum(max(32, 8 + v) for k, v in stats.items() if k >= 0),
                n_over=len(over), loop_over=sum(1 for k in over if blocks[0] <= k < blocks[1]),
                loop_cyc=sum(max(32, 8 + stats[k]) for k in range(blocks[0], blocks[1])))
    return text, probs, info
```

```python
from collections import defaultdict
from asmlib import *
from ksmall import srd, ARG, H2_OFF, PART_OFF, ACT_BYTES
import kattn
from kattn import vr, ar, MF

SLOT = 36864
LDS_BYTES = 4 * SLOT
A3, A4, D3, D4, STV, XHV = 8, 12, 20, 23, 26, 27
TMP = 28
XB, YB = 64, 160
HA = 144
RING, NRING = 192, 16


class TL(kattn.Timeline):
    pass


def dma_ops(B):
    slot = B % 4
    tag = f"dma{B}"
    groups = []
    if B < 18:
        gi, kb = B // 6, B % 6
        for q in range(3):
            grp = [Op(f"s_add_u32 m0, s47, {slot*SLOT + q*3072}", "s"),
                   Op(f"s_mov_b32 s50, {(96*kb + 16*q)*9216 + gi*192}", "s")]
            grp += [Op(f"buffer_load_dwordx4 v{D3+j}, s[16:19], s50 offen offset:{j*1024} lds", "vm", tag=tag) for j in range(3)]
            groups.append(grp)
    elif B < 27:
        i = B - 18
        for q in range(3):
            grp = [Op(f"s_add_u32 m0, s47, {slot*SLOT + q*3072}", "s"),
                   Op(f"s_mov_b32 s50, {24*q*1152 + i*128}", "s")]
            grp += [Op(f"buffer_load_dwordx4 v{D4+j}, s[20:23], s50 offen offset:{j*1024} lds", "vm", tag=tag) for j in range(3)]
            groups.append(grp)
    return groups


def prologue(g, name):
    g.e("s_cmp_ge_u32 s2, 256")
    g.e(f"s_cbranch_scc1 {name}_end")
    g.e(f"s_load_dwordx4 s[4:7], s[0:1], {ARG['w1']}")
    g.e(f"s_load_dwordx2 s[36:37], s[0:1], {ARG['w2']}")
    g.e(f"s_load_dwordx2 s[40:41], s[0:1], {ARG['ws']}")
    g.lines("""
    v_lshrrev_b32 v1, 6, v0
    v_and_b32 v2, 63, v0
    s_and_b32 s44, s2, 7
    s_lshl_b32 s44, s44, 1
    v_readfirstlane_b32 s46, v1
    s_bfe_u32 s45, s2, 0x10003
    s_add_u32 s44, s44, s45
    s_lshr_b32 s45, s2, 4
    s_mul_i32 s47, s46, 9216
    s_and_b32 s57, s46, 1
    s_mul_i32 s57, s57, 442368
    s_mov_b32 s58, 43691
    """)
    for j in range(3):
        g.e(f"v_lshrrev_b32 v3, 2, v2")
        g.e(f"v_add_u32 v3, {16*j}, v3")
        g.e("v_mul_lo_u32 v4, v3, s58")
        g.e("v_lshrrev_b32 v4, 17, v4")
        g.e("v_mul_u32_u24 v5, 3, v4")
        g.e("v_sub_u32 v5, v3, v5")
        g.e("v_and_b32 v6, 3, v2")
        g.e("v_lshlrev_b32 v6, 4, v6")
        g.e("v_lshl_add_u32 v6, v5, 6, v6")
        g.e("v_mul_u32_u24 v4, 9216, v4")
        g.e(f"v_add3_u32 v{D3+j}, v4, v6, s57")
        if j:
            g.e(f"v_subrev_u32 v{D3+j}, {j*1024}, v{D3+j}")
    g.e(f"v_lshlrev_b32 v{XHV}, 4, v2")
    g.e("s_waitcnt lgkmcnt(0)")
    g.e("s_cmp_ge_u32 s46, 2")
    g.e("s_cselect_b32 s4, s6, s4")
    g.e("s_cselect_b32 s5, s7, s5")
    g.e("s_mul_i32 s58, s44, 576")
    srd(g, 16, 4, "s58", 576 * 9216 - 15 * 576)
    g.e("s_lshl_b32 s58, s45, 2")
    g.e("s_add_u32 s58, s58, s46")
    g.e("s_mul_i32 s58, s58, 36864")
    g.e(f"s_add_u32 s58, s58, {H2_OFF}")
    srd(g, 24, 40, "s58", 36864)

    def xload(s):
        if s % 4 == 0:
            g.e(f"s_mov_b32 s59, {s*1024}")
        g.vm(f"buffer_load_dwordx4 {ar(4*s, 4)}, v{XHV}, s[24:27], s59 offen offset:{(s%4)*1024}", f"xr{s}")

    for B in range(3):
        for grp in dma_ops(B):
            for op in grp:
                emit_op(g, op)
        for s in range(6 * B, 6 * B + 6) if B < 2 else range(12, 36):
            if s % 4 != 0 and s in (6, 18):
                g.e(f"s_mov_b32 s59, {(s//4)*4096}")
            xload(s)
    g.e(f"s_mul_i32 s58, s44, {288*1152}")
    srd(g, 20, 36, "s58", 288 * 1152)
    g.e(f"s_mul_i32 s58, s44, {ACT_BYTES}")
    g.e(f"s_mul_i32 s59, s45, {16*9216}")
    g.e("s_add_u32 s58, s58, s59")
    g.e(f"s_add_u32 s58, s58, {PART_OFF}")
    srd(g, 32, 40, "s58", 16 * 9216)
    g.lines(f"""
    s_mov_b32 s55, 0xbfb8aa3b
    v_lshrrev_b32 v1, 5, v2
    v_bfe_u32 v6, v2, 2, 2
    v_and_b32 v7, 3, v2
    v_bfe_u32 v46, v2, 4, 1
    v_lshlrev_b32 v46, 5, v46
    v_lshl_add_u32 v47, v7, 3, v46
    v_lshrrev_b32 v38, 1, v7
    v_and_b32 v39, 1, v7
    v_lshl_add_u32 v38, v39, 1, v38
    v_lshl_add_u32 v46, v38, 3, v46
    v_and_b32 v40, 31, v2
    v_lshl_add_u32 v42, v1, 2, v6
    v_lshl_add_u32 v43, v1, 3, v6
    v_mul_u32_u24 v44, 192, v43
    v_add_u32 v{A3}, v44, v47
    """)
    for sl in range(1, 4):
        g.e(f"v_add_u32 v{A3+sl}, {sl*SLOT}, v{A3}")
    g.e("v_lshrrev_b32 v45, 1, v6")
    for nbl in range(2):
        g.e(f"v_xor_b32 v41, {nbl}, v45")
        g.e("v_lshlrev_b32 v41, 6, v41")
        g.e("v_lshl_add_u32 v44, v42, 7, v41")
        g.e(f"v_add_u32 v{A4+nbl}, v44, v46")
        for sl in range(1, 4):
            g.e(f"v_add_u32 v{A4+2*sl+nbl}, {sl*SLOT}, v{A4+nbl}")
    g.lines(f"""
    v_lshrrev_b32 v41, 3, v2
    s_mul_i32 s58, s46, 72
    v_add_u32 v41, s58, v41
    v_mul_u32_u24 v41, 1152, v41
    v_and_b32 v44, 7, v2
    v_bfe_u32 v45, v2, 4, 1
    v_lshlrev_b32 v45, 2, v45
    v_xor_b32 v45, v45, v44
    v_lshl_add_u32 v{D4}, v45, 4, v41
    """)
    for j in range(1, 3):
        g.e(f"v_add_u32 v{D4+j}, {j*(9216-1024)}, v{D4}")
    g.lines(f"""
    v_lshrrev_b32 v41, 3, v40
    s_lshl_b32 s58, s46, 2
    v_add_u32 v41, s58, v41
    v_mul_u32_u24 v41, 9216, v41
    v_lshl_add_u32 v41, v1, 7, v41
    v_lshl_add_u32 v{STV}, v44, 4, v41
    """)


def gen_k4(name, debug=None):
    g = Gen()
    if debug:
        g.e("s_memrealtime s[92:93]")
        g.e("s_memtime s[64:65]")
    prologue(g, name)
    saved = kattn.RING
    kattn.RING = RING
    T = TL()
    LA = 8
    pstart = {}
    gend = {}

    def hfrag(fb, a):
        return ar(HA + 8 * fb + 4 * a, 4) if fb < 6 else vr(YB + 8 * (fb - 6) + 4 * a, 4)

    def silu(gi, early, deads):
        buf = XB if gi % 2 == 0 else YB
        for fb in range(3):
            G, U = buf + 16 * fb, buf + 48 + 16 * fb
            for a in range(2):
                dead = deads(fb, a)
                rs = range(8 * a, 8 * a + 8)
                for r in rs:
                    T.v(f"v_mul_f32 v{TMP+r%8}, s55, v{G+r}", early, dead)
                for r in rs:
                    T.v(f"v_exp_f32 v{TMP+r%8}, v{TMP+r%8}", early, dead)
                    T.v(f"v_mul_f32 v{G+r}, v{G+r}, v{U+r}", early, dead)
                for r in rs:
                    T.v(f"v_add_f32 v{TMP+r%8}, 1.0, v{TMP+r%8}", early, dead)
                for r in rs:
                    T.v(f"v_rcp_f32 v{TMP+r%8}, v{TMP+r%8}", early, dead)
                for r in rs:
                    T.v(f"v_mul_f32 v{G+r}, v{G+r}, v{TMP+r%8}", early, dead)
                f9 = 3 * gi + fb
                for k in range(4):
                    if f9 < 6:
                        T.v(f"v_cvt_pk_bf16_f32 v{TMP+8+k}, v{G+8*a+2*k}, v{G+8*a+2*k+1}", early, dead)
                    else:
                        T.v(f"v_cvt_pk_bf16_f32 v{YB+8*(f9-6)+4*a+k}, v{G+8*a+2*k}, v{G+8*a+2*k+1}", early, dead)
                if f9 < 6:
                    for k in range(4):
                        T.v(f"v_accvgpr_write_b32 a{HA+8*f9+4*a+k}, v{TMP+8+k}", early, dead)

    for B in range(18):
        gi, kb = B // 6, B % 6
        pstart[B] = len(T.m)
        buf = XB if gi % 2 == 0 else YB
        pend = []
        for k in range(36):
            ks, mm, fb = k // 6, (k % 6) % 2, (k % 6) // 2
            idx = pstart[B] + k
            off = mm * 18432 + ks * 3072 + fb * 64
            rds = [f"ds_read_b64_tr_b16 {{}}, v{A3+B%4} offset:{off+u*768}" for u in range(2)]
            gp = max(-1, idx - LA)
            pend.append(T.frag(rds, [gp, gp], B, idx, f"w{B}.{k}"))
        for k in range(36):
            ks, mm, fb = k // 6, (k % 6) % 2, (k % 6) // 2
            s = 6 * kb + ks
            acc = buf + 48 * mm + 16 * fb
            need = [t for kk in range(k, k + 4) for t in pend[kk][1]] if k % 4 == 0 else []
            op = Op(f"{MF} {vr(acc, 16)}, {pend[k][0]}, {ar(4*s, 4)}, {'0' if s == 0 else vr(acc, 16)}", "m",
                    lneed=need, vneed=[f"xr{s}"] if gi == 0 else [])
            T.m.append(op)
        if kb == 5:
            gend[gi] = len(T.m) - 1
            if gi < 2:
                silu(gi, gend[gi] + 3, lambda fb, a, e=gend[gi]: e + 200)
    p4 = len(T.m)
    silu(2, gend[2] + 3, lambda fb, a: p4 + 2 * (12 + 2 * fb + a) - 1)

    final_tail = []
    ACC4, PK = YB + 32, XB
    for i in range(9):
        B = 18 + i
        pstart[B] = len(T.m)
        pend = []
        for k in range(36):
            ks, nbl = k // 2, k % 2
            idx = pstart[B] + k
            rds = [f"ds_read_b64_tr_b16 {{}}, v{A4+2*(B%4)+nbl} offset:{ks*2048+u*1024}" for u in range(2)]
            pend.append(T.frag(rds, [idx - LA, idx - LA], B, idx, f"w2{i}.{k}"))
        for k in range(36):
            ks, nbl = k // 2, k % 2
            acc = ACC4 + 32 * (i % 2) + 16 * nbl
            need = [t for kk in range(k, k + 4) for t in pend[kk][1]] if k % 4 == 0 else []
            T.mfma(vr(acc, 16), pend[k][0], hfrag(ks // 2, ks % 2), "0" if ks == 0 else vr(acc, 16), need)
        E = len(T.m) - 1
        pk = PK + 16 * (i % 2)
        cv, st = [], []
        for nbl in range(2):
            acc = ACC4 + 32 * (i % 2) + 16 * nbl
            for r in range(8):
                cv.append(f"v_cvt_pk_bf16_f32 v{pk+8*nbl+r}, v{acc+2*r}, v{acc+2*r+1}")
            for a in range(2):
                st.append(f"buffer_store_dwordx4 {vr(pk+8*nbl+4*a, 4)}, v{STV}, s[32:35], s56 offen offset:{(2*nbl+a)*256}")
        if i < 8:
            for c in cv:
                T.v(c, E + 4, E + 12)
            T.fixed[E + 11].append(Op(f"s_movk_i32 s56, {i*1024}", "s"))
            for k, s_ in enumerate(st):
                T.fixed[E + 12 + 2 * k].append(Op(s_, "vm", tag="st"))
        else:
            final_tail = ["s_nop 11", f"s_movk_i32 s56, {i*1024}"] + cv[:4] + [st[0]] + cv[4:8] + [st[1]] + cv[8:12] + [st[2]] + cv[12:] + [st[3]]

    bar = {}
    for B in range(27):
        gp = max(-1, T.first_read[B] - 1)
        bar[B] = gp
        op = Op("s_barrier", "s", vneed=[f"dma{B}"], cost=20)
        if B == 0:
            T.fixed[gp].insert(0, op)
        else:
            T.fixed[gp].append(op)
    for B in range(27):
        tgt = B + 2 if B >= 2 else (3 if B == 0 else None)
        if tgt is None or tgt > 26:
            continue
        gp, step = bar[B] + 2, 2
        if B == 0:
            gp = 1
        for grp in dma_ops(tgt):
            for op in grp:
                if op.kind == "vm":
                    T.fixed[gp].append(op)
                    gp += step
                else:
                    T.fixed[gp - 1].append(op)
    if debug:
        pts = [-1, 0, pstart[3], pstart[6], pstart[9], pstart[12], pstart[15], pstart[18], pstart[19], pstart[21], pstart[24], len(T.m) - 1]
        for k, gp in enumerate(pts):
            T.fixed[gp].append(Op(f"s_memtime s[{66+2*k}:{67+2*k}]", "s"))
    marks, stats = {}, {}
    schedule(g, T.m, T.fixed, T.tail, T.q, marks=marks, stats=stats)
    for ln in final_tail:
        if ln.startswith("buffer"):
            g.vm(ln)
        else:
            g.e(ln)
    if debug:
        g.e("s_waitcnt vmcnt(0)")
        g.e("s_memtime s[90:91]")
        g.e("s_memrealtime s[94:95]")
        g.e("s_waitcnt lgkmcnt(0)")
        srd(g, 8, 40, 0x8100000, 0x100000)
        for k in range(16):
            g.e(f"v_mov_b32 v{48+k}, s{64+2*k}")
        g.e("s_lshl_b32 s58, s2, 2")
        g.e("s_add_u32 s58, s58, s46")
        g.e("s_lshl_b32 s58, s58, 6")
        g.e("v_mov_b32 v1, s58")
        for k in range(4):
            g.vm(f"buffer_store_dwordx4 v[{48+4*k}:{51+4*k}], v1, s[8:11], 0 offen offset:{16*k}")
    g.label(f"{name}_end")
    g.e("s_endpgm")
    kattn.RING = saved
    probs = check_hazards(g.seq, name)
    info = dict(n_mfma=len(T.m), max_lq=g.max_lq, est_cycles=sum(max(32, 8 + v) for k, v in stats.items() if k >= 0),
                n_over=sum(1 for v in stats.values() if v > 24))
    return g.text(), probs, info
```

```python
from asmlib import *

XH_OFF = 0
H2_OFF = 0x240000
X1_OFF = 0x480000
TAB_OFF = 0x6C0000
MOD2_OFF = 0x6C2000
PART_OFF = 0x700000
ACT_BYTES = 2359296
PART_BYTES = 16 * ACT_BYTES

ARG = dict(x=0, k=8, v=16, wq=24, wo=32, w1=48, w3=56, w2=64, c=72, wmod=80, out=88, dbg=96, ws=104)


def srd(g, d, base, off, nbytes):
    if isinstance(off, str):
        g.e(f"s_add_u32 s{d}, s{base}, {off}")
        g.e(f"s_addc_u32 s{d+1}, s{base+1}, 0")
    elif off:
        g.e(f"s_add_u32 s{d}, s{base}, {off:#x}")
        g.e(f"s_addc_u32 s{d+1}, s{base+1}, 0")
    else:
        g.e(f"s_mov_b32 s{d}, s{base}")
        g.e(f"s_mov_b32 s{d+1}, s{base+1}")
    g.e(f"s_mov_b32 s{d+2}, {nbytes:#x}")
    g.e(f"s_mov_b32 s{d+3}, 0x20000")


def unpack8(g, src, dst, smask):
    for i in range(4):
        g.e(f"v_lshlrev_b32 v{dst+2*i}, 16, v{src+i}")
        g.e(f"v_and_b32 v{dst+2*i+1}, {smask}, v{src+i}")


def round8(g, x, tmp, smask):
    for i in range(4):
        g.e(f"v_cvt_pk_bf16_f32 v{tmp+i}, v{x+2*i}, v{x+2*i+1}")
    unpack8(g, tmp, x, smask)


def round1(g, x):
    g.e(f"v_cvt_pk_bf16_f32 v{x}, v{x}, v{x}")
    g.e(f"v_lshlrev_b32 v{x}, 16, v{x}")


def xlane_sum(g, regs, tmps):
    g.e("s_nop 1")
    for r in regs:
        g.e(f"v_add_f32_dpp v{r}, v{r}, v{r} row_ror:8 row_mask:0xf bank_mask:0xf")
    for swap in ("v_permlane16_swap_b32", "v_permlane32_swap_b32"):
        for r, t in zip(regs, tmps):
            g.e(f"v_mov_b32 v{t}, v{r}")
        g.e("s_nop 1")
        for r, t in zip(regs, tmps):
            g.e(f"{swap} v{r}, v{t}")
        g.e("s_nop 1")
        for r, t in zip(regs, tmps):
            g.e(f"v_add_f32 v{r}, v{r}, v{t}")


def row_reduce(g, val, tmp, rd, vw, vr, ldsoff):
    xlane_sum(g, [val], [tmp])
    g.ds(f"ds_write_b32 v{vw}, v{val} offset:{ldsoff}")
    g.wait(lall=True)
    g.e("s_barrier")
    g.ds(f"ds_read_b128 v[{rd}:{rd+3}], v{vr} offset:{ldsoff}")
    g.ds(f"ds_read_b128 v[{rd+4}:{rd+7}], v{vr} offset:{ldsoff+16}")
    g.ds(f"ds_read_b32 v{rd+8}, v{vr} offset:{ldsoff+32}")
    g.wait(lall=True)
    g.e(f"v_add_f32 v{val}, v{rd}, v{rd+1}")
    for i in range(2, 9):
        g.e(f"v_add_f32 v{val}, v{val}, v{rd+i}")


def layernorm8(g, x, sc, smask, vw, vr):
    m, t, q, rd, d = sc, sc + 1, sc + 2, sc + 4, sc + 16
    g.e(f"v_add_f32 v{m}, v{x}, v{x+1}")
    for i in range(2, 8):
        g.e(f"v_add_f32 v{m}, v{m}, v{x+i}")
    row_reduce(g, m, t, rd, vw, vr, 0)
    g.e(f"v_mul_f32 v{m}, 0x3ae38e39, v{m}")
    for i in range(8):
        g.e(f"v_sub_f32 v{d+i}, v{x+i}, v{m}")
    g.e(f"v_mul_f32 v{q}, v{d}, v{d}")
    for i in range(1, 8):
        g.e(f"v_fmac_f32 v{q}, v{d+i}, v{d+i}")
    row_reduce(g, q, t, rd, vw, vr, 512)
    g.e(f"v_mul_f32 v{q}, 0x3ae38e39, v{q}")
    round1(g, m)
    round1(g, q)
    g.e(f"v_add_f32 v{q}, 0x3727c5ac, v{q}")
    round1(g, q)
    g.e(f"v_sqrt_f32 v{q}, v{q}")
    g.e("s_nop 0")
    round1(g, q)
    g.e(f"v_rcp_f32 v{t}, v{q}")
    for i in range(8):
        g.e(f"v_sub_f32 v{x+i}, v{x+i}, v{m}")
    round8(g, x, rd, smask)
    for i in range(8):
        g.e(f"v_mul_f32 v{d+i}, v{x+i}, v{t}")
    for i in range(8):
        g.e(f"v_fma_f32 v{x+i}, -v{d+i}, v{q}, v{x+i}")
    for i in range(8):
        g.e(f"v_fmac_f32 v{d+i}, v{x+i}, v{t}")
    for i in range(4):
        g.e(f"v_cvt_pk_bf16_f32 v{rd+i}, v{d+2*i}, v{d+2*i+1}")
    return rd


def lane_setup(g):
    g.e("v_and_b32 v6, 63, v0")
    g.e("v_lshrrev_b32 v7, 6, v0")
    g.e("v_and_b32 v2, 7, v0")
    g.e("v_lshrrev_b32 v1, 3, v0")
    g.e("v_lshlrev_b32 v1, 4, v1")
    g.e("v_mul_u32_u24 v4, 48, v2")
    g.e("v_lshl_add_u32 v3, v7, 2, v4")
    g.e("v_lshrrev_b32 v5, 4, v0")
    g.e("v_lshlrev_b32 v5, 10, v5")
    g.e("v_bfe_u32 v6, v0, 3, 1")
    g.e("v_lshl_add_u32 v5, v6, 9, v5")
    g.e("v_lshl_add_u32 v5, v2, 4, v5")


def frag_off(g, dst):
    g.e("s_lshr_b32 s40, s2, 2")
    g.e("s_mul_i32 s40, s40, 36864")
    g.e("s_and_b32 s41, s2, 3")
    g.e("s_lshl_b32 s41, s41, 7")
    g.e("s_add_u32 s40, s40, s41")
    g.e(f"v_add_u32 v{dst}, s40, v5")


def rowmajor_off(g, dst):
    g.e("s_mul_i32 s42, s2, 9216")
    g.e(f"v_mul_u32_u24 v{dst}, 1152, v2")
    g.e(f"v_add3_u32 v{dst}, v{dst}, v1, s42")


def gen_k1(name):
    g = Gen()
    g.e("s_cmp_ge_u32 s2, 310")
    g.e(f"s_cbranch_scc1 {name}_end")
    g.e(f"s_load_dwordx2 s[4:5], s[0:1], {ARG['x']}")
    g.e(f"s_load_dwordx4 s[8:11], s[0:1], {ARG['c']}")
    g.e(f"s_load_dwordx2 s[6:7], s[0:1], {ARG['ws']}")
    g.e("s_mov_b32 s30, 0xffff0000")
    g.e("s_cmp_ge_u32 s2, 256")
    g.e(f"s_cbranch_scc1 {name}_mod")
    lane_setup(g)
    rowmajor_off(g, 8)
    frag_off(g, 9)
    g.e("s_waitcnt lgkmcnt(0)")
    srd(g, 12, 4, 0, ACT_BYTES)
    srd(g, 16, 6, XH_OFF, ACT_BYTES)
    g.vm("buffer_load_dwordx4 v[12:15], v8, s[12:15], 0 offen")
    g.wait(vall=True)
    unpack8(g, 12, 16, "s30")
    pk = layernorm8(g, 16, 24, "s30", 3, 4)
    g.vm(f"buffer_store_dwordx4 v[{pk}:{pk+3}], v9, s[16:19], 0 offen")
    g.e("s_endpgm")
    g.vq = []
    g.label(f"{name}_mod")
    g.e("s_sub_u32 s20, s2, 256")
    g.e("v_lshrrev_b32 v1, 3, v0")
    g.e("v_and_b32 v2, 7, v0")
    g.e("s_movk_i32 s21, 6912")
    g.e("v_mul_lo_u32 v3, v1, s21")
    g.e("v_lshl_add_u32 v3, v2, 4, v3")
    g.e("s_lshl_b32 s22, s20, 7")
    g.e("v_add_u32 v3, s22, v3")
    g.e("v_lshlrev_b32 v4, 1, v1")
    g.e("s_waitcnt lgkmcnt(0)")
    srd(g, 12, 8, 0, 1152)
    srd(g, 16, 10, 0, 576 * 6912)
    srd(g, 24, 6, TAB_OFF, 0x6000)
    for i in range(8):
        g.vm(f"buffer_load_ushort v{8+i}, v4, s[12:15], 0 offen offset:{i*144}", f"c{i}")
    for i in range(8):
        g.e(f"s_mov_b32 s23, {i*72*6912}")
        g.vm(f"buffer_load_dwordx4 v[{16+4*i}:{19+4*i}], v3, s[16:19], s23 offen", f"w{i}")
    g.wait(vtags=["c7"])
    for i in range(8):
        g.e(f"v_lshlrev_b32 v{8+i}, 16, v{8+i}")
    for i in range(8):
        g.e(f"v_mul_f32 v{48+i}, 0xbfb8aa3b, v{8+i}")
    for i in range(8):
        g.e(f"v_exp_f32 v{48+i}, v{48+i}")
    for i in range(8):
        g.e(f"v_add_f32 v{48+i}, 1.0, v{48+i}")
    for i in range(8):
        g.e(f"v_rcp_f32 v{48+i}, v{48+i}")
    for i in range(8):
        g.e(f"v_mul_f32 v{8+i}, v{8+i}, v{48+i}")
    round8(g, 8, 48, "s30")
    for i in range(8):
        g.wait(vtags=[f"w{i}"])
        unpack8(g, 16 + 4 * i, 48, "s30")
        for e_ in range(8):
            if i == 0:
                g.e(f"v_mul_f32 v{56+e_}, v{8+i}, v{48+e_}")
            else:
                g.e(f"v_fmac_f32 v{56+e_}, v{8+i}, v{48+e_}")
    xlane_sum(g, list(range(56, 64)), list(range(48, 56)))
    g.e("v_lshrrev_b32 v5, 6, v0")
    g.e("v_lshlrev_b32 v6, 8, v5")
    g.e("v_lshl_add_u32 v6, v2, 5, v6")
    g.ds("ds_write_b128 v6, v[56:59]")
    g.ds("ds_write_b128 v6, v[60:63] offset:16")
    g.e("v_readfirstlane_b32 s31, v5")
    g.wait(lall=True)
    g.e("s_barrier")
    g.e("s_cmp_lg_u32 s31, 0")
    g.e(f"s_cbranch_scc1 {name}_end")
    g.e("v_lshlrev_b32 v6, 2, v0")
    for w in range(9):
        g.ds(f"ds_read_b32 v{16+w}, v6 offset:{w*256}")
    g.e("s_mul_i32 s32, s20, 57")
    g.e("s_lshr_b32 s32, s32, 9")
    g.e("s_mul_i32 s33, s32, 9")
    g.e("s_sub_u32 s33, s20, s33")
    g.e("s_lshl_b32 s33, s33, 6")
    g.e("v_add_u32 v7, s33, v0")
    g.wait(lall=True)
    g.e("v_add_f32 v16, v16, v17")
    for w in range(2, 9):
        g.e(f"v_add_f32 v16, v16, v{16+w}")
    round1(g, 16)
    g.e("s_cmp_eq_u32 s32, 1")
    g.e(f"s_cbranch_scc1 {name}_plus1")
    g.e("s_cmp_eq_u32 s32, 4")
    g.e(f"s_cbranch_scc0 {name}_addr")
    g.label(f"{name}_plus1")
    g.e("v_add_f32 v16, 1.0, v16")
    round1(g, 16)
    g.label(f"{name}_addr")
    g.e("s_cmp_ge_u32 s32, 2")
    g.e(f"s_cbranch_scc1 {name}_lin")
    g.e("v_lshrrev_b32 v8, 3, v7")
    g.e("v_lshlrev_b32 v8, 6, v8")
    g.e("v_and_b32 v9, 7, v7")
    g.e("v_lshl_add_u32 v8, v9, 2, v8")
    g.e("s_cmp_eq_u32 s32, 0")
    g.e("s_cselect_b32 s34, 32, 0")
    g.e("v_add_u32 v8, s34, v8")
    g.e(f"s_branch {name}_st")
    g.label(f"{name}_lin")
    base = MOD2_OFF - TAB_OFF
    g.e(f"s_mov_b32 s34, {base}")
    g.e("s_cmp_eq_u32 s32, 3")
    g.e(f"s_cselect_b32 s34, {base+4608}, s34")
    g.e("s_cmp_eq_u32 s32, 4")
    g.e(f"s_cselect_b32 s34, {base+2304}, s34")
    g.e("s_cmp_eq_u32 s32, 5")
    g.e(f"s_cselect_b32 s34, {base+6912}, s34")
    g.e("v_lshlrev_b32 v8, 2, v7")
    g.e("v_add_u32 v8, s34, v8")
    g.label(f"{name}_st")
    g.vm("buffer_store_dword v16, v8, s[24:27], 0 offen")
    g.label(f"{name}_end")
    g.e("s_endpgm")
    return g, 64


def gen_reduce(name, final):
    g = Gen()
    g.e("s_cmp_ge_u32 s2, 256")
    g.e(f"s_cbranch_scc1 {name}_end")
    g.e(f"s_load_dwordx2 s[4:5], s[0:1], {ARG['out'] if final else ARG['x']}")
    g.e(f"s_load_dwordx2 s[6:7], s[0:1], {ARG['ws']}")
    g.e("s_mov_b32 s30, 0xffff0000")
    lane_setup(g)
    rowmajor_off(g, 8)
    g.e("v_lshlrev_b32 v10, 4, v0")
    g.e("v_add_u32 v10, s42, v10")
    g.e("v_lshlrev_b32 v11, 1, v1")
    if not final:
        frag_off(g, 9)
    g.e("s_waitcnt lgkmcnt(0)")
    srd(g, 12, 4, 0, ACT_BYTES)
    srd(g, 16, 6, PART_OFF, PART_BYTES)
    srd(g, 20, 6, X1_OFF, ACT_BYTES)
    srd(g, 24, 6, MOD2_OFF, 9216)
    srd(g, 32, 6, H2_OFF, ACT_BYTES)
    P = 64
    for i in range(16):
        g.e(f"s_mov_b32 s28, {i*ACT_BYTES}")
        g.vm(f"buffer_load_dwordx4 v[{P+4*i}:{P+4*i+3}], v10, s[16:19], s28 offen", f"p{i}")
    if final:
        g.vm("buffer_load_dwordx4 v[12:15], v10, s[20:23], 0 offen", "x")
        g.e("s_movk_i32 s28, 6912")
        g.vm("buffer_load_dwordx4 v[16:19], v11, s[24:27], s28 offen", "x")
        g.vm("buffer_load_dwordx4 v[20:23], v11, s[24:27], s28 offen offset:16", "x")
    else:
        g.vm("buffer_load_dwordx4 v[12:15], v8, s[12:15], 0 offen", "x")
        g.vm("buffer_load_dwordx4 v[16:19], v11, s[24:27], 0 offen", "x")
        g.vm("buffer_load_dwordx4 v[20:23], v11, s[24:27], 0 offen offset:16", "x")
        g.vm("buffer_load_dwordx4 v[128:131], v11, s[24:27], 0 offen offset:2304", "y")
        g.vm("buffer_load_dwordx4 v[132:135], v11, s[24:27], 0 offen offset:2320", "y")
        g.e("s_movk_i32 s28, 4608")
        g.vm("buffer_load_dwordx4 v[136:139], v11, s[24:27], s28 offen", "y")
        g.vm("buffer_load_dwordx4 v[140:143], v11, s[24:27], s28 offen offset:16", "y")
    A, T = 24, 32
    for i in range(16):
        g.wait(vtags=[f"p{i}"])
        if i == 0:
            unpack8(g, P, A, "s30")
        else:
            unpack8(g, P + 4 * i, T, "s30")
            for k in range(4):
                g.e(f"v_pk_add_f32 v[{A+2*k}:{A+2*k+1}], v[{A+2*k}:{A+2*k+1}], v[{T+2*k}:{T+2*k+1}]")
    round8(g, A, T, "s30")
    g.wait(vtags=["x"])
    for k in range(8):
        g.e(f"v_mul_f32 v{A+k}, v{A+k}, v{16+k}")
    round8(g, A, T, "s30")
    unpack8(g, 12, 16, "s30")
    for k in range(8):
        g.e(f"v_add_f32 v{A+k}, v{A+k}, v{16+k}")
    if final:
        for k in range(4):
            g.e(f"v_cvt_pk_bf16_f32 v{T+k}, v{A+2*k}, v{A+2*k+1}")
        g.vm(f"buffer_store_dwordx4 v[{T}:{T+3}], v8, s[12:15], 0 offen")
    else:
        round8(g, A, 12, "s30")
        g.vm("buffer_store_dwordx4 v[12:15], v10, s[20:23], 0 offen")
        pk = layernorm8(g, A, 32, "s30", 3, 4)
        unpack8(g, pk, A, "s30")
        g.wait(vtags=["y"])
        for k in range(8):
            g.e(f"v_mul_f32 v{A+k}, v{A+k}, v{128+k}")
        round8(g, A, 64, "s30")
        for k in range(8):
            g.e(f"v_add_f32 v{A+k}, v{A+k}, v{136+k}")
        for k in range(4):
            g.e(f"v_cvt_pk_bf16_f32 v{64+k}, v{A+2*k}, v{A+2*k+1}")
        g.vm("buffer_store_dwordx4 v[64:67], v9, s[32:35], 0 offen")
    g.label(f"{name}_end")
    g.e("s_endpgm")
    return g, 144
```

```python
import sys
sys.path.insert(0, "work")
from asmlib import *
import ksmall, kattn

PRE = open("adaLN_cond__gqa_block_cached__glu_gated_swiglu__prompt.s.ref").read().split("; Override launch")[0]

def build(kernels=("k1", "k2", "k3", "k4", "k5"), verbose=True, **opt):
    launches, code, descs = [], "", ""
    allp = []
    def small(name, g, nv, grid, lds):
        nonlocal code, descs
        allp.extend(check_hazards(g.seq, name))
        code += header(name) + g.text()
        descs += descriptor(name, nv, (nv + 3) // 4 * 4, 64)
        launches.append(f"; @launch kernel={name} grid=({grid},1,1) block=(576,1,1) lds={lds}")
    for k in kernels:
        if k == "k1":
            g, nv = ksmall.gen_k1("k1_kernel"); small("k1_kernel", g, nv, 310, 4096)
        elif k == "k3":
            g, nv = ksmall.gen_reduce("k3_kernel", False); small("k3_kernel", g, nv, 256, 1024)
        elif k == "k5":
            g, nv = ksmall.gen_reduce("k5_kernel", True); small("k5_kernel", g, nv, 256, 1024)
        elif k == "k2":
            text, probs, info = kattn.gen_k2("k2_kernel", **opt.get("k2", {}))
            allp.extend(probs)
            if verbose: print("k2", info)
            code += header("k2_kernel") + text
            descs += descriptor("k2_kernel", 512, 256)
            launches.append(f"; @launch kernel=k2_kernel grid=(256,1,1) block=(256,1,1) lds={kattn.LDS_BYTES}")
        elif k == "k4":
            import kffn
            text, probs, info = kffn.gen_k4("k4_kernel", **opt.get("k4", {}))
            allp.extend(probs)
            if verbose: print("k4", info)
            code += header("k4_kernel") + text
            descs += descriptor("k4_kernel", 512, 256)
            launches.append(f"; @launch kernel=k4_kernel grid=(256,1,1) block=(256,1,1) lds={kffn.LDS_BYTES}")
    for p in allp[:40]:
        print("HAZARD", p)
    text = PRE + "\n".join(launches) + '\n.amdgcn_target "amdgcn-amd-amdhsa--gfx950"\n.text\n' + code + descs
    return text, allp

if __name__ == "__main__":
    ks = sys.argv[2].split(",") if len(sys.argv) > 2 else ("k1", "k2", "k3", "k4", "k5")
    dbg = len(sys.argv) > 3 and sys.argv[3] == "dbg"
    text, probs = build(ks, k2=dict(debug=dbg), k4=dict(debug=dbg))
    out = sys.argv[1] if len(sys.argv) > 1 else "full.s"
    open(out, "w").write(text)
    print("wrote", out, len(text), "bytes; hazards:", len(probs))
    import hb
    hb.build(text, out[:-2] + ".co", 14)
    print("assembled ok")
```

```python
import re

DMA_ALONE = False
TRANS = ("v_exp_f32", "v_log_f32", "v_rcp_f32", "v_rsq_f32", "v_sqrt_f32", "v_sin_f32", "v_cos_f32")
_REG = re.compile(r"^(-|\|)?(v|a|s)(\d+)\|?$")
_RNG = re.compile(r"^(v|a|s)\[(\d+):(\d+)\]$")


def regs_of(tok):
    tok = tok.strip()
    if tok.startswith("-"):
        tok = tok[1:]
    if tok.startswith("abs(") and tok.endswith(")"):
        tok = tok[4:-1]
    m = _RNG.match(tok)
    if m:
        return {(m.group(1), i) for i in range(int(m.group(2)), int(m.group(3)) + 1)}
    m = _REG.match(tok)
    if m:
        return {(m.group(2), int(m.group(3)))}
    if tok == "vcc":
        return {("s", 106), ("s", 107)}
    if tok == "exec":
        return {("s", 126), ("s", 127)}
    if tok == "m0":
        return {("s", 124)}
    return set()


class Ins:
    __slots__ = ("text", "mn", "kind", "rd", "wr", "srcc", "srcab", "nops")

    def __init__(self, text):
        self.text = text
        t = text.split(";")[0].strip()
        parts = t.split(None, 1)
        self.mn = parts[0] if parts else ""
        rest = parts[1] if len(parts) > 1 else ""
        ops = [o.strip() for o in rest.split(",")] if rest else []
        if ops:
            last = ops[-1].split()
            ops[-1] = last[0] if last else ""
            mods = last[1:]
        else:
            mods = []
        mn = self.mn
        self.rd, self.wr, self.srcc, self.srcab = set(), set(), set(), set()
        self.nops = 1
        R = [regs_of(o) for o in ops]
        if mn.endswith(":") or mn.startswith("."):
            self.kind = "label"
            self.nops = 0
        elif mn.startswith("v_mfma"):
            self.kind = "mfma"
            self.wr = R[0]
            self.srcab = R[1] | R[2]
            self.srcc = R[3]
            self.rd = self.srcab | self.srcc
        elif mn.startswith("v_cmp"):
            self.kind = "valu"
            self.wr = R[0]
            self.rd = set().union(*R[1:])
        elif mn.startswith("v_permlane") and "swap" in mn:
            self.kind = "valu"
            self.wr = R[0] | R[1]
            self.rd = R[0] | R[1]
        elif mn.startswith("v_"):
            self.kind = "valu"
            self.wr = set(R[0])
            srcs = R[1:]
            if mn.startswith(("v_add_co", "v_sub_co", "v_addc_co", "v_subb_co")):
                self.wr |= R[1]
                srcs = R[2:]
            self.rd = set().union(*srcs) if srcs else set()
            if mn.startswith(("v_fmac", "v_dot2c", "v_pk_fmac")):
                self.rd |= R[0]
            if mn.startswith("v_cndmask") and len(ops) == 3:
                self.rd |= regs_of("vcc")
        elif mn.startswith("ds_read") or mn.startswith("ds_bpermute") or mn.startswith("ds_swizzle"):
            self.kind = "lds"
            self.wr = R[0]
            self.rd = set().union(*R[1:])
        elif mn.startswith("ds_"):
            self.kind = "lds"
            self.rd = set().union(*R)
        elif mn.startswith("buffer_load") or mn.startswith("global_load"):
            self.kind = "vmem"
            if "lds" in mods or "_lds_" in mn:
                self.rd = set().union(*R) | regs_of("m0")
            else:
                self.wr = R[0]
                self.rd = set().union(*R[1:])
        elif mn.startswith("buffer_") or mn.startswith("global_"):
            self.kind = "vmem"
            self.rd = set().union(*R) if R else set()
        elif mn == "s_nop":
            self.kind = "salu"
            self.nops = int(ops[0], 0) + 1
        elif mn in ("s_waitcnt", "s_barrier", "s_endpgm", "s_setprio", "s_sleep") or mn.startswith(("s_branch", "s_cbranch")):
            self.kind = "ctl"
        elif mn.startswith("s_cmp") or mn.startswith("s_bitcmp"):
            self.kind = "salu"
            self.rd = set().union(*R)
        elif mn.startswith("s_load") or mn.startswith("s_mem"):
            self.kind = "smem"
            self.wr = R[0]
            self.rd = set().union(*R[1:]) if len(R) > 1 else set()
        elif mn.startswith("s_"):
            self.kind = "salu"
            self.wr = R[0] if R else set()
            self.rd = set().union(*R[1:]) if len(R) > 1 else set()
        else:
            raise ValueError("unknown instruction: " + text)

    @property
    def cost(self):
        if self.kind == "label":
            return 0
        if self.kind == "mfma":
            return 8
        if self.mn in TRANS or self.mn.replace("_e32", "").replace("_e64", "") in TRANS:
            return 8
        return 4 * self.nops


def _isv(rs):
    return {r for r in rs if r[0] in "va"}


def _iss(rs):
    return {r for r in rs if r[0] == "s"}


def _base(mn):
    return mn.replace("_e32", "").replace("_e64", "")


def need_between(a, b):
    need, why = 0, ""
    if a.kind == "valu":
        wv = _isv(a.wr)
        ws = _iss(a.wr)
        if b.kind == "mfma" and wv & b.rd:
            need, why = 2, "valu->mfma"
        if _base(a.mn) in TRANS and b.kind in ("valu", "lds", "vmem") and wv & b.rd:
            need, why = max(need, 1), "trans->use"
        if b.mn.startswith("v_permlane") and wv & b.rd:
            need, why = max(need, 2), "valu->permlane"
        if "dpp" in b.text and wv & b.rd:
            need, why = max(need, 2), "valu->dpp"
        if b.mn.startswith(("v_readfirstlane", "v_readlane")) and wv & b.rd:
            need, why = max(need, 1), "valu->readlane"
        if b.kind == "vmem" and ws & b.rd:
            need, why = max(need, 5), "valu sgpr->vmem"
        if b.kind == "valu" and ws & b.rd:
            need, why = max(need, 2), "valu sgpr->valu"
        if b.kind == "salu" and ws & b.rd:
            need, why = max(need, 1), "valu sgpr->salu(pad)"
    if a.kind == "mfma":
        p8 = "32x32x16" in a.mn
        big = 12 if p8 else 8
        if b.kind == "mfma":
            if a.wr & b.srcab:
                need, why = big, "mfma D->AB"
            if a.wr & b.srcc and a.wr != b.srcc:
                need, why = max(need, 10 if p8 else 6), "mfma D->C partial"
            if a.wr & b.wr and a.wr != b.srcc:
                need, why = max(need, 10 if p8 else 6), "mfma D->D waw"
        elif b.kind in ("valu", "lds", "vmem"):
            if b.kind == "valu" and a.srcc & b.wr:
                need, why = (7 if p8 else 3), "mfma C war"
            if a.wr & (b.rd | b.wr):
                need, why = big, "mfma D->valu/mem"
    if a.kind == "salu" and ("s", 124) in a.wr and b.kind == "vmem" and ("s", 124) in b.rd:
        need, why = max(need, 1), "m0->dma"
    if a.kind == "vmem" and "store" in a.mn and ("x4" in a.mn or "x3" in a.mn):
        data = regs_of(a.text.split(None, 1)[1].split(",")[0]) if a.mn.startswith("buffer") else set()
        if data & b.wr and b.kind in ("valu", "lds", "vmem", "mfma"):
            need, why = max(need, 2), "store data war"
    return need, why


def missing_states(seq, b):
    dist, worst = 0, 0
    for a in reversed(seq):
        if dist >= 13:
            break
        if a.kind != "label":
            need, _ = need_between(a, b)
            worst = max(worst, need - dist)
            dist += a.nops
    return worst


def check_hazards(seq, name=""):
    probs = []
    for j, b in enumerate(seq):
        if b.kind == "label":
            continue
        dist = 0
        for i in range(j - 1, -1, -1):
            if dist >= 13:
                break
            a = seq[i]
            if a.kind == "label":
                continue
            need, why = need_between(a, b)
            if dist < need:
                probs.append(f"{name}: {why} need {need} have {dist}: [{a.text.strip()}] -> [{b.text.strip()}]")
            dist += a.nops
    return probs


class Gen:
    def __init__(self):
        self.seq = []
        self.lq = []
        self.vq = []
        self.max_lq = 0
        self.auto = True
        self.padded = 0

    def e(self, text):
        ins = Ins(text)
        ms = missing_states(self.seq, ins) if self.auto else 0
        if ms > 0:
            self.seq.append(Ins(f"s_nop {ms-1}"))
            self.padded += ms
        self.seq.append(ins)
        return ms

    def lines(self, text):
        for ln in text.strip().splitlines():
            ln = ln.strip()
            if ln:
                self.e(ln)

    def label(self, name):
        self.seq.append(Ins(name + ":"))

    def ds(self, text, tag=None):
        self.e(text)
        self.lq.append(tag)
        self.max_lq = max(self.max_lq, len(self.lq))

    def vm(self, text, tag=None):
        self.e(text)
        self.vq.append(tag)

    def _need(self, q, tags):
        idx = -1
        tags = set(tags)
        for i, t in enumerate(q):
            if t in tags:
                idx = i
        return idx

    def wait(self, ltags=(), vtags=(), lall=False, vall=False):
        li = len(self.lq) - 1 if lall else self._need(self.lq, ltags)
        vi = len(self.vq) - 1 if vall else self._need(self.vq, vtags)
        parts = []
        if vi >= 0:
            n = min(len(self.vq) - 1 - vi, 63)
            parts.append(f"vmcnt({n})")
            self.vq = self.vq[len(self.vq) - n:] if n else []
        if li >= 0:
            n = min(len(self.lq) - 1 - li, 15)
            parts.append(f"lgkmcnt({n})")
            self.lq = self.lq[len(self.lq) - n:] if n else []
        if parts:
            self.e("s_waitcnt " + " ".join(parts))
            return True
        return False

    def would_wait(self, ltags=(), vtags=()):
        return self._need(self.lq, ltags) >= 0 or self._need(self.vq, vtags) >= 0

    def text(self, seq=None):
        out = []
        for i in (self.seq if seq is None else seq):
            out.append(i.text if i.kind == "label" else "    " + i.text)
        return "\n".join(out) + "\n"


class Op:
    def __init__(self, text, kind="v", tag=None, lneed=(), vneed=(), early=-10**9, dead=10**9, cost=None):
        self.text = text
        self.kind = kind
        self.tag = tag
        self.lneed = tuple(lneed)
        self.vneed = tuple(vneed)
        self.early = early
        self.dead = dead
        self.cost = cost if cost is not None else Ins(text).cost


def emit_op(g, op):
    c = 0
    p0 = g.padded
    if op.lneed or op.vneed:
        if g.wait(op.lneed, op.vneed):
            c += 4
    if op.kind == "ds":
        g.ds(op.text, op.tag)
    elif op.kind == "vm":
        g.vm(op.text, op.tag)
    elif op.kind == "label":
        g.label(op.text)
    else:
        g.e(op.text)
    return c + op.cost + 4 * (g.padded - p0)


def schedule(g, mfmas, fixed, tail, queue, budget=24, start=-1, marks=None, stats=None):
    qi = 0
    n = len(mfmas)
    for i in range(start, n):
        if marks is not None:
            marks[i] = len(g.seq)
        if i >= 0:
            emit_op(g, mfmas[i])
        used = 0
        for op in fixed.get(i, []):
            used += emit_op(g, op)
        reserve = sum(op.cost for op in tail.get(i, []))
        nxt = mfmas[i + 1] if i + 1 < n else None
        if nxt is not None and g.would_wait(nxt.lneed, nxt.vneed):
            reserve += 4
        while qi < len(queue):
            op = queue[qi]
            must = any(queue[k].dead <= i + 1 for k in range(qi, min(len(queue), qi + 400)))
            if op.early > i:
                if must and any(queue[k].dead <= i + 1 for k in range(qi, min(len(queue), qi + 400))) and op.dead <= i + 1:
                    raise RuntimeError(f"op {op.text} early {op.early} > gap {i} but deadline {op.dead}")
                if must:
                    raise RuntimeError(f"queue order conflict at gap {i}: {op.text} early {op.early}")
                break
            extra = 4 if g.would_wait(op.lneed, op.vneed) else 0
            if not must and used + op.cost + extra + reserve > budget:
                break
            if not must and missing_states(g.seq, Ins(op.text)) > (1 if extra else 0):
                break
            used += emit_op(g, op)
            qi += 1
        for op in tail.get(i, []):
            used += emit_op(g, op)
        if stats is not None:
            stats[i] = used + (4 if (nxt is not None and g.would_wait(nxt.lneed, nxt.vneed)) else 0)
    while qi < len(queue):
        emit_op(g, queue[qi])
        qi += 1
    if marks is not None:
        marks[n] = len(g.seq)


def descriptor(name, nv, acc, nsgpr=102):
    return f"""
.section .rodata,"a"
.p2align 6
.amdhsa_kernel {name}
  .amdhsa_next_free_vgpr {nv}
  .amdhsa_next_free_sgpr {nsgpr}
  .amdhsa_accum_offset {acc}
  .amdhsa_group_segment_fixed_size 0
  .amdhsa_kernarg_size 112
  .amdhsa_user_sgpr_count 2
  .amdhsa_user_sgpr_kernarg_segment_ptr 1
  .amdhsa_system_sgpr_workgroup_id_x 1
.end_amdhsa_kernel
.text
"""


def header(name):
    return f""".globl {name}
.p2align 8
.type {name},@function
{name}:
"""


def schedule2(g, mfmas, fixed, flex, tail, queue, budget_fn, marks=None, stats=None, window=16):
    n = len(mfmas)
    for op in queue:
        op.ins = Ins(op.text)
        op.done = False
    qi = 0
    hoisted = set()
    order = sorted(range(len(queue)), key=lambda k: queue[k].dead)
    dl_ptr = 0

    def indep(k):
        b = queue[k].ins
        if b.kind != "valu":
            return all(queue[j].done for j in range(qi, k))
        for j in range(qi, k):
            a = queue[j]
            if a.done:
                continue
            if a.ins.kind != "valu" or (a.ins.wr & (b.rd | b.wr)) or (a.ins.rd & b.wr):
                return False
        return True

    cur = {"budget": 8}

    def candidates(i):
        cnt = 0
        k = qi
        while k < len(queue) and cnt < (window if cur["budget"] <= 12 else 1):
            if not queue[k].done:
                cnt += 1
                if queue[k].early <= i and indep(k):
                    yield k
            k += 1

    for i in range(-1, n):
        budget = budget_fn(i) if callable(budget_fn) else budget_fn
        cur["budget"] = budget
        if marks is not None:
            marks[i] = len(g.seq)
        if i >= 0:
            emit_op(g, mfmas[i])
        used = 0
        for op in fixed.get(i, []):
            used += emit_op(g, op)
        if i not in hoisted:
            for op in flex.get(i, []):
                used += emit_op(g, op)
        reserve = sum(op.cost for op in tail.get(i, []))
        nxt = mfmas[i + 1] if i + 1 < n else None
        if nxt is not None and g.would_wait(nxt.lneed, nxt.vneed):
            reserve += 4
        fl = flex.get(i + 1, [])
        if fl and not fixed.get(i + 1) and not tail.get(i + 1) and used + reserve + sum(o.cost for o in fl) <= budget:
            cs = [queue[k] for k in candidates(i + 1)]
            if cs and cs[0].cost > budget - sum(o.cost for o in fl) and cs[0].cost <= budget:
                for op in fl:
                    used += emit_op(g, op)
                hoisted.add(i + 1)
        elif (fl and DMA_ALONE and budget <= 12 and any(o.kind == "vm" for o in fixed.get(i + 1, []))
              and used + reserve + sum(o.cost for o in fl) <= budget):
            for op in fl:
                used += emit_op(g, op)
            hoisted.add(i + 1)
        if DMA_ALONE and budget <= 12 and any(o.kind == "vm" for o in fixed.get(i, [])):
            used += 4
        last_must = -1
        while dl_ptr < len(order) and queue[order[dl_ptr]].done:
            dl_ptr += 1
        p = dl_ptr
        while p < len(order) and queue[order[p]].dead <= i + 1:
            if not queue[order[p]].done:
                last_must = max(last_must, order[p])
            p += 1
        while True:
            while qi < len(queue) and queue[qi].done:
                qi += 1
            if qi <= last_must:
                op = queue[qi]
                if op.early > i:
                    raise RuntimeError(f"queue conflict at gap {i}: {op.text} early {op.early}")
                used += emit_op(g, op)
                op.done = True
                continue
            fit = []
            for k in candidates(i):
                op = queue[k]
                extra = 4 if g.would_wait(op.lneed, op.vneed) else 0
                if used + op.cost + extra + reserve <= budget and missing_states(g.seq, op.ins) <= (1 if extra else 0):
                    fit.append(k)
            pick = fit[0] if fit else None
            if fit and budget <= 12:
                big = [k for k in fit if queue[k].cost >= 8]
                small = [k for k in fit if queue[k].cost < 8]
                if budget == 8:
                    pick = big[0] if big else small[0]
                else:
                    pick = small[0] if small else (big[0] if used <= 4 else None)
            if pick is None:
                break
            used += emit_op(g, queue[pick])
            queue[pick].done = True
        for op in tail.get(i, []):
            used += emit_op(g, op)
        if stats is not None:
            stats[i] = used + (4 if (nxt is not None and g.would_wait(nxt.lneed, nxt.vneed)) else 0)
    for op in queue:
        if not op.done:
            emit_op(g, op)
            op.done = True
    if marks is not None:
        marks[n] = len(g.seq)
```

```python
import sys
sys.path.insert(0, "work")
from asmlib import *
import ksmall, kattn

PRE = open("adaLN_cond__gqa_block_cached__glu_gated_swiglu__prompt.s.ref").read().split("; Override launch")[0]

def build(kernels=("k1", "k2", "k3", "k4", "k5"), verbose=True, **opt):
    launches, code, descs = [], "", ""
    ksmall.SELFPF = opt.get("selfpf", False)
    import asmlib
    asmlib.DMA_ALONE = opt.get("dma_alone", False)
    allp = []
    def small(name, g, nv, grid, lds):
        nonlocal code, descs
        allp.extend(check_hazards(g.seq, name))
        code += header(name) + g.text()
        descs += descriptor(name, nv, (nv + 3) // 4 * 4, 72)
        launches.append(f"; @launch kernel={name} grid=({grid},1,1) block=(576,1,1) lds={lds}")
    for k in kernels:
        if k == "k1":
            g, nv = ksmall.gen_k1("k1_kernel", opt.get("dbg"), opt.get("k1pf"), kattn.CSCALE if opt["k2"].get("tabscale") else None, True, opt.get("k1wide")); small("k1_kernel", g, nv, 364 if opt.get("k1wide") else 310, 4096)
        elif k == "k3":
            g, nv = ksmall.gen_reduce("k3_kernel", False, opt.get("dbg"), opt.get("a16", False), opt.get("f16", False), opt["k2"].get("fused", False)); small("k3_kernel", g, nv, 256, 1024)
        elif k == "k5":
            g, nv = ksmall.gen_reduce("k5_kernel", True, opt.get("dbg"), opt.get("f16", False), opt.get("f16", False), opt["k2"].get("fused", False)); small("k5_kernel", g, nv, 256, 1024)
        elif k == "k2":
            if opt.get("a16"):
                import kattn16
                text, probs, info = kattn16.gen_k2("k2_kernel", **opt.get("k2", {}))
            else:
                text, probs, info = kattn.gen_k2("k2_kernel", **opt.get("k2", {}))
            allp.extend(probs)
            if verbose: print("k2", info)
            code += header("k2_kernel") + text
            descs += descriptor("k2_kernel", 512, 256)
            launches.append(f"; @launch kernel=k2_kernel grid=(256,1,1) block=(256,1,1) lds={kattn.LDS_BYTES}")
        elif k == "k24":
            import kattn16, kffn16
            (t2, rare), probs, info = kattn16.gen_k2("k4_kernel", chain=True, **opt.get("k2", {}))
            allp.extend(probs)
            if verbose: print("k2", info)
            t4, probs, info = kffn16.gen_k4("k4_kernel", chain=True, vq0=info["vq"], **opt.get("k4", {}))
            allp.extend(probs)
            if verbose: print("k4", info)
            code += header("k4_kernel") + t2 + "k4_kernel_ffn:\n" + t4 + rare
            descs += descriptor("k4_kernel", 512, 256)
            launches.append(f"; @launch kernel=k4_kernel grid=(256,1,1) block=(256,1,1) lds={163840 if opt['k2'].get('slot5') else kffn16.LDS_BYTES}")
        elif k == "k4":
            if opt.get('f16'):
                import kffn16 as kffn
            else:
                import kffn
            text, probs, info = kffn.gen_k4("k4_kernel", **opt.get("k4", {}))
            allp.extend(probs)
            if verbose: print("k4", info)
            code += header("k4_kernel") + text
            descs += descriptor("k4_kernel", 512, 256)
            launches.append(f"; @launch kernel=k4_kernel grid=(256,1,1) block=(256,1,1) lds={kffn.LDS_BYTES}")
    for p in allp[:40]:
        print("HAZARD", p)
    text = PRE + "\n".join(launches) + '\n.amdgcn_target "amdgcn-amd-amdhsa--gfx950"\n.text\n' + code + descs
    return text, allp

if __name__ == "__main__":
    ks = sys.argv[2].split(",") if len(sys.argv) > 2 else ("k1", "k2", "k3", "k4", "k5")
    dbg = len(sys.argv) > 3 and sys.argv[3] == "dbg"
    text, probs = build(ks, k2=dict(debug=dbg), k4=dict(debug=dbg), dbg=dbg)
    out = sys.argv[1] if len(sys.argv) > 1 else "full.s"
    open(out, "w").write(text)
    print("wrote", out, len(text), "bytes; hazards:", len(probs))
    import hb
    hb.build(text, out[:-2] + ".co", 14)
    print("assembled ok")
```

```python
import struct
from collections import defaultdict
from asmlib import *
from ksmall import srd, ARG, XH_OFF, TAB_OFF, MOD2_OFF, PART_OFF, ACT_BYTES, unpack8, round1, round8, xlane_sum

MF = "v_mfma_f32_32x32x16_bf16"
HEAD = 60
THRESH = 0x5D800000
CSCALE = struct.unpack("<I", struct.pack("<f", 1.4426950408889634 * 128 ** -0.5))[0]

AK, AV, DK, DV, DWO, AWO, STV = 8, 16, 20, 24, 25, 29, 33
LR, TMP, MX = 34, 38, 46
SB, PB, CI, QB = 48, 112, 144, 176
DWQ, AWQ, XHV, TBV = 240, 244, 252, 253
UT, TB, HB = 38, 176, 208
RING, NRING = 128, 16
TAB_LDS = 131072
EARLY = 0
LDS_BYTES = TAB_LDS + 5120


def vr(b, n):
    return f"v[{b}:{b+n-1}]"


def ar(b, n):
    return f"a[{b}:{b+n-1}]"


def S_(b, j):
    return SB + 32 * b + 16 * j


def P_(b, j):
    return PB + 16 * b + 8 * j


def xraw(s):
    return 4 * s if s < 32 else 192 + 4 * (s - 32)


class Timeline:
    def __init__(self):
        self.m = []
        self.fixed = defaultdict(list)
        self.tail = defaultdict(list)
        self.q = []
        self.ring_i = 0
        self.ring_last = [-10**9] * NRING
        self.first_read = {}

    def frag(self, reads, gaps, bundle, last_use, tag):
        e = self.ring_i % NRING
        self.ring_i += 1
        assert self.ring_last[e] <= min(gaps), (self.ring_last[e], gaps, tag)
        self.ring_last[e] = last_use
        base = RING + 4 * e
        for k, (rd, gp) in enumerate(zip(reads, gaps)):
            dst = ar(base, 4) if len(reads) == 1 else ar(base + 2 * k, 2)
            self.fixed[gp].append(Op(rd.format(dst), "ds", tag=f"{tag}.{k}"))
            self.first_read[bundle] = min(self.first_read.get(bundle, 10**9), gp)
        return ar(base, 4), [f"{tag}.{k}" for k in range(len(reads))]

    def mfma(self, d, a, b, c, lneed=()):
        self.m.append(Op(f"{MF} {d}, {a}, {b}, {c}", "m", lneed=lneed))
        return len(self.m) - 1

    def v(self, text, early, dead, **kw):
        self.q.append(Op(text, "v", early=early, dead=dead, **kw))


def dma_ops(B):
    slot = B % 4
    tag = f"dma{B}"
    groups = []
    if B < 9:
        for jh in range(2):
            grp = [Op(f"s_add_u32 m0, s47, {jh*65536 + slot*16384}", "s"),
                   Op(f"s_mov_b32 s50, {B*64*8192 + jh*256}", "s")]
            grp += [Op(f"buffer_load_dwordx4 v{DWQ+j}, s[16:19], s50 offen offset:{j*1024} lds", "vm", tag=tag) for j in range(4)]
            groups.append(grp)
    elif B < 42:
        n = B - 9
        if n >= 1:
            grp = [Op(f"s_add_u32 m0, s47, {65536 + slot*16384}", "s")]
            grp += [Op(f"buffer_load_dwordx4 v{DV}, s[12:15], s49 offen offset:{j*1024} lds", "vm", tag=tag) for j in range(4)]
            grp += [Op("s_add_u32 s49, s49, 0x4000", "s")]
            groups.append(grp)
        if n <= 31:
            grp = [Op(f"s_add_u32 m0, s47, {slot*16384}", "s")]
            grp += [Op(f"buffer_load_dwordx4 v{DK+j}, s[8:11], s48 offen offset:{j*1024} lds", "vm", tag=tag) for j in range(4)]
            grp += [Op("s_add_u32 s48, s48, 0x4000", "s")]
            groups.append(grp)
    elif B < 51:
        i = B - 42
        for jh in range(2):
            grp = [Op(f"s_add_u32 m0, s47, {jh*65536 + slot*16384}", "s"),
                   Op(f"s_mov_b32 s50, {jh*128*1152 + i*128}", "s")]
            grp += [Op(f"buffer_load_dwordx4 v{DWO+j}, s[20:23], s50 offen offset:{j*1024} lds", "vm", tag=tag) for j in range(4)]
            groups.append(grp)
    return groups


def xload_ops(s):
    return [Op(f"s_mov_b32 s59, {(s//4)*4096}", "s"),
            Op(f"buffer_load_dwordx4 {ar(xraw(s), 4)}, v{XHV}, s[24:27], s59 offen offset:{(s%4)*1024}{XFLAG}", "vm", tag=f"xr{s}")]


def code_prefetch_setup(g, nchunks, vreg):
    g.e("s_getpc_b64 s[60:61]")
    g.e("s_lshr_b32 s62, s2, 3")
    g.e("s_lshl_b32 s62, s62, 2")
    g.e("s_add_u32 s62, s62, s46")
    g.e(f"s_mul_i32 s63, s62, {(65536 + nchunks - 1) // nchunks}")
    g.e("s_lshr_b32 s63, s63, 16")
    g.e(f"s_mul_i32 s63, s63, {nchunks}")
    g.e("s_sub_u32 s62, s62, s63")
    g.e("s_lshl_b32 s62, s62, 13")
    g.e(f"v_lshlrev_b32 v{vreg}, 7, v2")
    g.e(f"v_add_u32 v{vreg}, s62, v{vreg}")


def remap(g, mode):
    if mode == 1:
        g.e("s_and_b32 s44, s2, 1")
        g.e("s_lshl_b32 s44, s44, 3")
        g.e("s_bfe_u32 s45, s2, 0x30003")
        g.e("s_add_u32 s44, s44, s45")
        g.e("s_bfe_u32 s45, s2, 0x20001")
        g.e("s_lshl_b32 s45, s45, 2")
        g.e("s_lshr_b32 s58, s2, 6")
        g.e("s_add_u32 s45, s45, s58")
    elif mode == 2:
        g.e("s_and_b32 s44, s2, 3")
        g.e("s_lshl_b32 s44, s44, 2")
        g.e("s_bfe_u32 s45, s2, 0x20003")
        g.e("s_add_u32 s44, s44, s45")
        g.e("s_bfe_u32 s45, s2, 0x10002")
        g.e("s_lshl_b32 s45, s45, 3")
        g.e("s_lshr_b32 s58, s2, 5")
        g.e("s_add_u32 s45, s45, s58")


def prologue(g, name):
    g.e("s_cmp_ge_u32 s2, 256")
    g.e(f"s_cbranch_scc1 {name}_end")
    g.e(f"s_load_dwordx4 s[4:7], s[0:1], {ARG['k']}")
    g.e(f"s_load_dwordx4 s[36:39], s[0:1], {ARG['wq']}")
    g.e(f"s_load_dwordx2 s[40:41], s[0:1], {ARG['ws']}")
    g.e(f"s_load_dwordx4 s[96:99], s[0:1], {ARG['w1']}")
    g.e(f"s_load_dwordx2 s[100:101], s[0:1], {ARG['w2']}")
    g.lines("""
    v_lshrrev_b32 v1, 6, v0
    v_and_b32 v2, 63, v0
    s_and_b32 s44, s2, 7
    s_lshl_b32 s44, s44, 1
    v_readfirstlane_b32 s46, v1
    s_bfe_u32 s45, s2, 0x10003
    s_add_u32 s44, s44, s45
    s_lshr_b32 s45, s2, 4
    s_mov_b32 s53, 0xffff0000
    """)
    remap(g, MAPMODE)
    g.lines("""
    v_lshrrev_b32 v3, 4, v2
    v_and_b32 v4, 15, v2
    v_lshlrev_b32 v5, 2, v3
    v_xor_b32 v5, v5, v4
    v_lshlrev_b32 v5, 4, v5
    s_lshl_b32 s47, s46, 12
    s_lshl_b32 s57, s46, 17
    """)
    g.e(f"v_lshl_add_u32 v{DWQ}, v3, 13, v5")
    g.e(f"v_add_u32 v{DWQ}, s57, v{DWQ}")
    for j in range(1, 4):
        g.e(f"v_add_u32 v{DWQ+j}, {j*(32768-1024)}, v{DWQ}")
    g.e(f"v_lshlrev_b32 v{XHV}, 4, v2")
    g.e("s_waitcnt lgkmcnt(0)")
    g.e("s_lshl_b32 s58, s44, 9")
    srd(g, 16, 36, "s58", 576 * 8192 - 15 * 512)
    srd(g, 28, 40, TAB_OFF, 5120)
    g.e("s_lshl_b32 s58, s45, 2")
    g.e("s_add_u32 s58, s58, s46")
    g.e("s_mul_i32 s58, s58, 36864")
    if XH_OFF:
        g.e(f"s_add_u32 s58, s58, {XH_OFF}")
    srd(g, 24, 40, "s58", 36864)
    for grp in dma_ops(0):
        for op in grp:
            emit_op(g, op)
    g.e("s_lshl_b32 s58, s46, 10")
    g.e(f"s_add_u32 m0, s58, {TAB_LDS}")
    g.e("s_movk_i32 s59, 0x1000")
    g.vm(f"buffer_load_dwordx4 v{XHV}, s[28:31], s58 offen lds", "dma0")
    g.e(f"s_mov_b32 m0, {TAB_LDS + 4096}")
    g.e("s_nop 0")
    g.vm(f"buffer_load_dwordx4 v{XHV}, s[28:31], s59 offen lds", "dma0")

    for s in range(6):
        for op in xload_ops(s):
            emit_op(g, op)
    for grp in dma_ops(1):
        for op in grp:
            emit_op(g, op)
    if EARLY == 2:
        for s in range(6, 10):
            for op in xload_ops(s):
                emit_op(g, op)
        for grp in dma_ops(2):
            for op in grp:
                emit_op(g, op)
    late_setup(g)
    if EARLY == 1:
        for s in range(6, 10):
            for op in xload_ops(s):
                emit_op(g, op)
        for grp in dma_ops(2):
            for op in grp:
                emit_op(g, op)


def late_setup(g, fused=False):
    g.e("s_lshl_b32 s58, s44, 19")
    srd(g, 8, 4, "s58", 524288)
    srd(g, 12, 6, "s58", 524288)
    g.e(f"s_mul_i32 s58, s44, {256*1152}")
    srd(g, 20, 38, "s58", 256 * 1152)
    g.e(f"s_mul_i32 s58, s44, {ACT_BYTES}")
    g.e(f"s_mul_i32 s59, s45, {16*9216}")
    g.e("s_add_u32 s58, s58, s59")
    g.e(f"s_add_u32 s58, s58, {PART_OFF}")
    srd(g, 32, 40, "s58", 16 * 9216)
    g.lines(f"""
    s_mov_b32 s48, 0
    s_mov_b32 s49, 0
    s_mov_b32 s51, 6
    s_mov_b32 s54, {THRESH:#x}
    s_mov_b32 s55, {CSCALE:#x}
    v_lshrrev_b32 v1, 5, v2
    v_bfe_u32 v6, v2, 2, 2
    v_and_b32 v7, 3, v2
    v_bfe_u32 v46, v2, 4, 1
    v_lshlrev_b32 v46, 5, v46
    v_lshl_add_u32 v47, v7, 3, v46
    v_lshrrev_b32 v38, 1, v7
    v_and_b32 v39, 1, v7
    v_lshl_add_u32 v38, v39, 1, v38
    v_lshl_add_u32 v46, v38, 3, v46
    v_and_b32 v40, 31, v2
    """)
    for s in range(8):
        g.e(f"v_add_u32 v41, {2*s}, v1")
        g.e("v_xor_b32 v41, v41, v4")
        g.e("v_lshlrev_b32 v41, 4, v41")
        g.e(f"v_lshl_add_u32 v{AK+s}, v40, 8, v41")
    g.e("v_lshl_add_u32 v42, v1, 2, v6")
    g.e(f"v_lshl_add_u32 v43, v1, {5 if fused else 3}, v6")
    for db in range(4):
        g.e(f"v_xor_b32 v41, {db}, v6")
        g.e("v_lshlrev_b32 v41, 6, v41")
        g.e("v_lshl_add_u32 v44, v42, 8, v41")
        g.e(f"v_add_u32 v{AV+db}, v44, v47")
        g.e(f"v_add_u32 v{AV+db}, 0x10000, v{AV+db}")
        g.e("v_lshl_add_u32 v44, v43, 8, v41")
        g.e(f"v_add_u32 v{AWQ+db}, v44, v46")
        g.e(f"v_add_u32 v{AWQ+4+db}, 0x10000, v{AWQ+db}")
    g.e("v_lshrrev_b32 v45, 1, v6")
    for nbl in range(2):
        g.e(f"v_xor_b32 v41, {nbl}, v45")
        g.e("v_lshlrev_b32 v41, 6, v41")
        g.e("v_lshl_add_u32 v44, v42, 7, v41")
        g.e(f"v_add_u32 v{AWO+nbl}, v44, v46")
        g.e(f"v_add_u32 v{AWO+2+nbl}, 0x10000, v{AWO+nbl}")
    for j in range(4):
        g.e(f"v_add_u32 v41, {4*j}, v3")
        g.e("v_xor_b32 v41, v41, v4")
        g.e("v_lshlrev_b32 v41, 4, v41")
        g.e("v_lshl_add_u32 v41, v3, 8, v41")
        g.e(f"v_add_u32 v{DK+j}, s47, v41")
    g.e(f"v_lshl_add_u32 v{DV}, v3, 8, v5")
    g.e(f"v_add_u32 v{DV}, s47, v{DV}")
    g.lines(f"""
    v_lshrrev_b32 v41, 3, v2
    s_lshl_b32 s58, s46, 5
    v_add_u32 v41, s58, v41
    v_mul_u32_u24 v41, 1152, v41
    v_and_b32 v44, 7, v2
    v_bfe_u32 v45, v2, 4, 1
    v_lshlrev_b32 v45, 2, v45
    v_xor_b32 v45, v45, v44
    v_lshl_add_u32 v{DWO}, v45, 4, v41
    """)
    for j in range(1, 4):
        g.e(f"v_add_u32 v{DWO+j}, {j*(9216-1024)}, v{DWO}")
    g.e("v_lshrrev_b32 v41, 3, v40")
    g.lines(f"""
    s_lshl_b32 s58, s46, 2
    v_add_u32 v41, s58, v41
    v_mul_u32_u24 v41, 9216, v41
    v_lshl_add_u32 v41, v1, 7, v41
    v_lshl_add_u32 v{STV}, v44, 4, v41
    v_lshlrev_b32 v{TBV}, {8 if fused else 6}, v1
    v_add_u32 v{TBV}, {TAB_LDS}, v{TBV}
    v_mov_b32 v{LR+1}, 0
    v_mov_b32 v{LR+3}, 0
    """)


def emit_groups(g, grps):
    for grp in grps:
        for op in grp:
            emit_op(g, op)


def prologue_fused(g, name, fine=False):
    XR, W, C, A8, U8 = 48, 192, 228, 8, 16
    cnt = [0]

    def st():
        if fine:
            g.e(f"s_memrealtime s[{70+2*cnt[0]}:{71+2*cnt[0]}]")
            cnt[0] += 1

    def xr(cb, i):
        return XR + 16 * cb + 4 * i

    g.e("s_cmp_ge_u32 s2, 256")
    g.e(f"s_cbranch_scc1 {name}_end")
    g.e("s_getpc_b64 s[60:61]")
    g.e(f"s_load_dwordx2 s[24:25], s[0:1], {ARG['x']}")
    g.e(f"s_load_dwordx4 s[8:11], s[0:1], {ARG['c']}")
    g.e("v_lshlrev_b32 v46, 6, v0")
    g.e("global_load_dword v47, v46, s[60:61]")
    g.e(f"s_load_dwordx4 s[36:39], s[0:1], {ARG['wq']}")
    g.e(f"s_load_dwordx4 s[40:43], s[0:1], {ARG['dbg']}")
    g.e(f"s_load_dwordx4 s[4:7], s[0:1], {ARG['k']}")
    g.e(f"s_load_dwordx4 s[96:99], s[0:1], {ARG['w1']}")
    g.e(f"s_load_dwordx2 s[100:101], s[0:1], {ARG['w2']}")
    g.lines("""
    v_lshrrev_b32 v1, 6, v0
    v_and_b32 v2, 63, v0
    s_and_b32 s44, s2, 7
    s_lshl_b32 s44, s44, 1
    v_readfirstlane_b32 s46, v1
    s_bfe_u32 s45, s2, 0x10003
    s_add_u32 s44, s44, s45
    s_lshr_b32 s45, s2, 4
    s_mov_b32 s53, 0xffff0000
    """)
    remap(g, MAPMODE)
    g.lines(f"""
    v_bfe_u32 v6, v2, 2, 3
    v_mul_u32_u24 v6, 1152, v6
    v_lshrrev_b32 v7, 5, v2
    v_lshl_add_u32 v6, v7, 6, v6
    v_and_b32 v40, 3, v0
    v_lshl_add_u32 v6, v40, 4, v6
    v_lshrrev_b32 v38, 2, v0
    v_mul_u32_u24 v39, 6912, v38
    v_lshl_add_u32 v39, v40, 4, v39
    v_lshlrev_b32 v38, 1, v38
    s_lshl_b32 s58, s45, 2
    s_add_u32 s58, s58, s46
    s_mul_i32 s58, s58, 36864
    s_lshl_b32 s57, s2, 6
    """)
    g.e("s_waitcnt lgkmcnt(0)")
    st()
    srd(g, 12, 10, "s57", 576 * 6912 - 107 * 64)
    g.e("s_movk_i32 s10, 1152")
    g.e("s_mov_b32 s11, 0x20000")
    srd(g, 24, 24, "s58", 36864)
    g.e("s_cmp_ge_u32 s2, 108")
    g.e(f"s_cbranch_scc1 {name}_ld")
    for i in range(9):
        g.e(f"buffer_load_ushort v{C+i}, v38, s[8:11], 0 offen offset:{i*128}")
    for i in range(9):
        g.e(f"s_mov_b32 s59, {i*64*6912}")
        g.e(f"buffer_load_dwordx4 {vr(W+4*i, 4)}, v39, s[12:15], s59 offen")
    g.label(f"{name}_ld")

    def xl(i):
        g.e(f"s_movk_i32 s59, {i*9216}")
        for cb in range(9):
            g.vm(f"buffer_load_dwordx4 {vr(xr(cb, i), 4)}, v6, s[24:27], s59 offen offset:{cb*128}", f"x{i}")

    xl(0)
    xl(1)
    g.lines("""
    s_mov_b32 s60, s40
    s_mov_b32 s61, s41
    s_movk_i32 s62, 256
    s_mov_b32 s63, 0x20000
    s_mov_b32 s40, s42
    s_mov_b32 s41, s43
    """)
    srd(g, 28, 40, TAB_OFF, 0x6000)
    st()
    g.e("s_cmp_ge_u32 s2, 108")
    g.e(f"s_cbranch_scc1 {name}_ln")

    g.e("s_waitcnt vmcnt(27)")
    for i in range(9):
        g.e(f"v_lshlrev_b32 v{C+i}, 16, v{C+i}")
    for i in range(9):
        g.e(f"v_mul_f32 v{24+i}, 0xbfb8aa3b, v{C+i}")
    for i in range(9):
        g.e(f"v_exp_f32 v{24+i}, v{24+i}")
    for i in range(9):
        g.e(f"v_add_f32 v{24+i}, 1.0, v{24+i}")
    for i in range(9):
        g.e(f"v_rcp_f32 v{24+i}, v{24+i}")
    for i in range(9):
        g.e(f"v_mul_f32 v{C+i}, v{C+i}, v{24+i}")
    for i in range(9):
        round1(g, C + i)
    for i in range(9):
        if i % 3 == 0:
            g.e(f"s_waitcnt vmcnt({24-i})")
        unpack8(g, W + 4 * i, U8, "s53")
        for e_ in range(8):
            g.e(f"{'v_mul_f32' if i == 0 else 'v_fmac_f32'} v{A8+e_}, v{C+i}, v{U8+e_}")
    g.e("s_nop 1")
    for r in range(8):
        g.e(f"v_add_f32_dpp v{A8+r}, v{A8+r}, v{A8+r} row_ror:4 row_mask:0xf bank_mask:0xf")
    xlane_sum(g, list(range(A8, A8 + 8)), list(range(U8, U8 + 8)))
    g.e("v_lshlrev_b32 v41, 7, v1")
    g.e("v_lshl_add_u32 v41, v40, 5, v41")
    g.e(f"v_add_u32 v41, {TAB_LDS}, v41")
    g.e(f"ds_write_b128 v41, {vr(A8, 4)}")
    g.e(f"ds_write_b128 v41, {vr(A8+4, 4)} offset:16")
    g.e("s_waitcnt lgkmcnt(0)")
    g.e("s_barrier")
    g.e("s_cmp_lg_u32 s46, 0")
    g.e(f"s_cbranch_scc1 {name}_ln")
    g.e("v_and_b32 v42, 31, v2")
    g.e("v_lshlrev_b32 v41, 2, v42")
    g.e(f"v_add_u32 v41, {TAB_LDS}, v41")
    for w in range(4):
        g.e(f"ds_read_b32 v{A8+w}, v41 offset:{w*128}")
    g.lines("""
    s_mul_i32 s56, s2, 57
    s_lshr_b32 s56, s56, 10
    s_mul_i32 s57, s56, 18
    s_sub_u32 s57, s2, s57
    s_lshl_b32 s57, s57, 5
    v_add_u32 v42, s57, v42
    s_waitcnt lgkmcnt(0)
    """)
    g.e(f"v_add_f32 v{A8}, v{A8}, v{A8+1}")
    g.e(f"v_add_f32 v{A8+2}, v{A8+2}, v{A8+3}")
    g.e(f"v_add_f32 v{A8}, v{A8}, v{A8+2}")
    round1(g, A8)
    g.e(f"v_add_f32 v{A8+1}, 1.0, v{A8}")
    round1(g, A8 + 1)
    base = MOD2_OFF - TAB_OFF
    g.lines(f"""
    s_cmp_eq_u32 s56, 1
    s_cselect_b64 vcc, -1, 0
    s_cmp_eq_u32 s56, 4
    s_cselect_b64 vcc, -1, vcc
    v_cndmask_b32 v{A8}, v{A8}, v{A8+1}, vcc
    v_lshrrev_b32 v43, 3, v42
    v_lshlrev_b32 v43, 6, v43
    v_and_b32 v44, 7, v42
    v_lshl_add_u32 v43, v44, 2, v43
    v_lshlrev_b32 v44, 2, v42
    s_cmp_ge_u32 s56, 2
    s_cselect_b64 vcc, -1, 0
    v_cndmask_b32 v43, v43, v44, vcc
    s_mov_b32 s57, 32
    s_cmp_eq_u32 s56, 1
    s_cselect_b32 s57, 0, s57
    s_cmp_eq_u32 s56, 2
    s_cselect_b32 s57, {base}, s57
    s_cmp_eq_u32 s56, 3
    s_cselect_b32 s57, {base+4608}, s57
    s_cmp_eq_u32 s56, 4
    s_cselect_b32 s57, {base+2304}, s57
    s_cmp_eq_u32 s56, 5
    s_cselect_b32 s57, {base+6912}, s57
    buffer_store_dword v{A8}, v43, s[28:31], s57 offen sc1
    """)
    g.label(f"{name}_ln")
    st()
    xl(2)
    xl(3)
    g.lines(f"""
    s_cmp_lg_u32 s46, 0
    s_cbranch_scc1 {name}_nosig
    s_cmp_ge_u32 s2, 36
    s_cbranch_scc1 {name}_nosig
    v_mov_b32 v41, 0
    v_mov_b32 v42, 1
    s_waitcnt vmcnt(18)
    s_mov_b64 exec, 1
    buffer_atomic_add v42, v41, s[60:63], 0 offen sc1
    s_mov_b64 exec, -1
    """)
    g.label(f"{name}_nosig")
    g.lines(f"""
    v_lshrrev_b32 v3, 4, v2
    v_and_b32 v4, 15, v2
    v_lshlrev_b32 v5, 2, v3
    v_xor_b32 v5, v5, v4
    v_lshlrev_b32 v5, 4, v5
    s_lshl_b32 s47, s46, 12
    s_lshl_b32 s57, s46, 17
    v_lshl_add_u32 v{DWQ}, v3, 13, v5
    v_add_u32 v{DWQ}, s57, v{DWQ}
    v_lshlrev_b32 v{XHV}, 4, v2
    """)
    for j in range(1, 4):
        g.e(f"v_add_u32 v{DWQ+j}, {j*(32768-1024)}, v{DWQ}")
    g.e("s_lshl_b32 s58, s44, 9")
    srd(g, 16, 36, "s58", 576 * 8192 - 15 * 512)
    g.e("s_mov_b32 s56, 0x3f803f80")
    for k in range(16):
        g.e(f"v_mov_b32 v{8+k}, 0")
    for i in range(4):
        g.wait(vtags=[f"x{i}"])
        for cb in range(9):
            for k in range(4):
                x_ = xr(cb, i) + k
                g.e(f"v_dot2_f32_bf16 v{8+i+8*(k%2)}, v{x_}, s56, v{8+i+8*(k%2)}")
                g.e(f"v_dot2_f32_bf16 v{12+i+8*(k%2)}, v{x_}, v{x_}, v{12+i+8*(k%2)}")
        if i == 1:
            emit_groups(g, dma_ops(0))
    st()
    g.e("s_cmp_lg_u32 s46, 0")
    g.e(f"s_cbranch_scc1 {name}_go")
    g.e("v_mov_b32 v41, 0")
    g.e("s_mov_b32 s56, 0x40000")
    g.label(f"{name}_poll")
    g.e("buffer_load_dword v42, v41, s[60:63], 0 offen sc1")
    g.e("s_waitcnt vmcnt(0)")
    g.e("v_readfirstlane_b32 s57, v42")
    g.e("s_sub_u32 s56, s56, 1")
    g.e(f"s_cbranch_scc1 {name}_got")
    g.e("s_cmp_ge_u32 s57, 36")
    g.e(f"s_cbranch_scc1 {name}_got")
    g.e("s_sleep 8")
    g.e(f"s_branch {name}_poll")
    g.label(f"{name}_got")
    g.e("s_movk_i32 s57, 0x1000")
    for k in range(4):
        g.e(f"buffer_load_dwordx4 {vr(192+4*k, 4)}, v{XHV}, s[28:31], 0 offen offset:{k*1024} sc1")
    g.e(f"buffer_load_dwordx4 {vr(208, 4)}, v{XHV}, s[28:31], s57 offen sc1")
    g.e(f"v_add_u32 v41, {TAB_LDS}, v{XHV}")
    for k in range(5):
        g.e(f"s_waitcnt vmcnt({4-k})")
        g.e(f"ds_write_b128 v41, {vr(192+4*k, 4)} offset:{k*1024}")
    g.e("s_waitcnt lgkmcnt(0)")
    g.label(f"{name}_go")
    st()
    emit_groups(g, dma_ops(1) + dma_ops(2))
    for k in range(8):
        g.e(f"v_add_f32 v{8+k}, v{8+k}, v{16+k}")
    for perm in ("[1,0,3,2]", "[2,3,0,1]"):
        g.e("s_nop 1")
        for k in range(8):
            g.e(f"v_add_f32_dpp v{8+k}, v{8+k}, v{8+k} quad_perm:{perm} row_mask:0xf bank_mask:0xf")
    for k in range(8):
        g.e(f"v_mov_b32 v{16+k}, v{8+k}")
    for k in range(8):
        g.e(f"v_permlane32_swap_b32 v{8+k}, v{16+k}")
    for k in range(8):
        g.e(f"v_add_f32 v{8+k}, v{8+k}, v{16+k}")
    for k in range(8):
        g.e(f"v_mul_f32 v{8+k}, 0x3ae38e39, v{8+k}")
    for i in range(4):
        g.e(f"v_fma_f32 v{12+i}, -v{8+i}, v{8+i}, v{12+i}")
    for i in range(4):
        g.e(f"v_max_f32 v{12+i}, 0, v{12+i}")
    round8(g, 8, 16, "s53")
    for i in range(4):
        g.e(f"v_add_f32 v{12+i}, 0x3727c5ac, v{12+i}")
    for i in range(4):
        round1(g, 12 + i)
    for i in range(4):
        g.e(f"v_sqrt_f32 v{12+i}, v{12+i}")
    for i in range(4):
        round1(g, 12 + i)
    for i in range(4):
        g.e(f"v_rcp_f32 v{16+2*i}, v{12+i}")
    for i in range(4):
        g.e(f"v_mul_f32 v{24+2*i}, v{8+i}, v{16+2*i}")
    for i in range(4):
        g.e(f"v_sub_f32 v{24+2*i}, 0, v{24+2*i}")
    g.e("s_mov_b32 s56, 0x55555555")
    g.e("s_mov_b32 s57, 0x55555555")
    g.e("s_mov_b32 s58, 0x33333333")
    g.e("s_mov_b32 s59, 0x33333333")
    g.e("v_lshlrev_b32 v41, 8, v7")
    g.e("v_lshl_add_u32 v41, v40, 6, v41")
    g.e(f"v_add_u32 v41, {TAB_LDS}, v41")
    g.e("s_barrier")
    st()
    TT, T1, TBL = 192, 208, 224
    dpp = " row_mask:0xf bank_mask:0xf"

    def tbl(cb):
        base_ = TBL if cb % 2 == 0 else 32
        return base_

    def tread(cb):
        b_ = tbl(cb)
        for k in range(4):
            dst = b_ + 4 * k if cb % 2 == 0 else (32, 36, 42, 252)[k]
            g.ds(f"ds_read_b128 {vr(dst, 4)}, v41 offset:{cb*512+16*k}", f"t{cb}")

    def treg(cb, k):
        if cb % 2 == 0:
            return TBL + k
        return (32, 36, 42, 252)[k // 4] + k % 4

    tread(0)
    for cb in range(9):
        if cb < 8:
            tread(cb + 1)
        g.wait(ltags=[f"t{cb}"])
        for i in range(4):
            t = TT + 8 * (i % 2)
            unpack8(g, xr(cb, i), t, "s53")
            for k in range(4):
                g.e(f"v_pk_fma_f32 {vr(t+2*k, 2)}, {vr(t+2*k, 2)}, {vr(16+2*i, 2)}, {vr(24+2*i, 2)} op_sel_hi:[1,0,0]")
            for k in range(4):
                g.e(f"v_pk_fma_f32 {vr(t+2*k, 2)}, {vr(t+2*k, 2)}, {vr(treg(cb, 2*k), 2)}, {vr(treg(cb, 8+2*k), 2)}")
            for k in range(4):
                g.e(f"v_cvt_pk_bf16_f32 v{xr(cb, i)+k}, v{t+2*k}, v{t+2*k+1}")
        g.e("s_mov_b64 vcc, s[56:57]")
        for d in range(4):
            for (lo, hi) in ((0, 1), (2, 3)):
                g.e(f"v_cndmask_b32_dpp v{T1+4*lo+d}, v{xr(cb, hi)+d}, v{xr(cb, lo)+d}, vcc quad_perm:[1,0,3,2]{dpp}")
        g.e("s_not_b64 vcc, s[56:57]")
        for d in range(4):
            for (lo, hi) in ((0, 1), (2, 3)):
                g.e(f"v_cndmask_b32_dpp v{T1+4*hi+d}, v{xr(cb, lo)+d}, v{xr(cb, hi)+d}, vcc quad_perm:[1,0,3,2]{dpp}")
        g.e("s_mov_b64 vcc, s[58:59]")
        for d in range(4):
            for (lo, hi) in ((0, 2), (1, 3)):
                g.e(f"v_cndmask_b32_dpp v{xr(cb, lo)+d}, v{T1+4*hi+d}, v{T1+4*lo+d}, vcc quad_perm:[2,3,0,1]{dpp}")
        g.e("s_not_b64 vcc, s[58:59]")
        for d in range(4):
            for (lo, hi) in ((0, 2), (1, 3)):
                g.e(f"v_cndmask_b32_dpp v{xr(cb, hi)+d}, v{T1+4*lo+d}, v{T1+4*hi+d}, vcc quad_perm:[2,3,0,1]{dpp}")
        for q in range(4):
            for d in range(4):
                g.e(f"v_accvgpr_write_b32 a{xraw(4*cb+q)+d}, v{xr(cb, q)+d}")
        if cb == 2:
            emit_groups(g, dma_ops(3))
    g.e(f"v_lshlrev_b32 v{XHV}, 4, v2")
    st()
    late_setup(g, True)
    st()


def rare_path(g, name, b, sites):
    g.label(f"{name}_rare{b}")
    g.e("s_nop 15")
    for j in range(2):
        s, s2, p = S_(b, j), S_(1 - b, j), P_(b, j)
        lo, ln = LR + 2 * j + (1 - b), LR + 2 * j + b
        g.e(f"v_max3_f32 v{MX}, v{s}, v{s+1}, v{s+2}")
        for r in range(3, 15, 2):
            g.e(f"v_max3_f32 v{MX}, v{MX}, v{s+r}, v{s+r+1}")
        g.e(f"v_max_f32 v{MX}, v{MX}, v{s+15}")
        g.e(f"v_mov_b32 v{MX+1}, v{MX}")
        g.e("s_nop 1")
        g.e(f"v_permlane32_swap_b32 v{MX}, v{MX+1}")
        g.e("s_nop 1")
        g.e(f"v_max_f32 v{MX}, v{MX}, v{MX+1}")
        g.e(f"v_add_f32 v{MX}, {HEADHEX}, v{MX}")
        g.e(f"v_max_f32 v{MX}, 0, v{MX}")
        g.e(f"v_ceil_f32 v{MX}, v{MX}")
        g.e(f"v_cvt_i32_f32 v{MX+1}, v{MX}")
        g.e(f"v_sub_u32 v{MX+1}, 0, v{MX+1}")
        g.e(f"v_ldexp_f32 v{ln}, v{lo}, v{MX+1}")
        for r in range(16):
            g.e(f"v_sub_f32 v{CI+16*j+r}, v{CI+16*j+r}, v{MX}")
            g.e(f"v_sub_f32 v{s2+r}, v{s2+r}, v{MX}")
            g.e(f"v_sub_f32 v{s+r}, v{s+r}, v{MX}")
        for r in range(16):
            g.e(f"v_exp_f32 v{s+r}, v{s+r}")
        g.e("s_nop 0")
        for r in range(16):
            g.e(f"v_add_f32 v{ln}, v{ln}, v{s+r}")
        for r in range(8):
            g.e(f"v_cvt_pk_bf16_f32 v{p+r}, v{s+2*r}, v{s+2*r+1}")
        for r0 in range(0, 64, 8):
            for k in range(8):
                g.e(f"v_accvgpr_read_b32 v{TMP+k}, a{64*j+r0+k}")
            for k in range(8):
                g.e(f"v_ldexp_f32 v{TMP+k}, v{TMP+k}, v{MX+1}")
            for k in range(8):
                g.e(f"v_accvgpr_write_b32 a{64*j+r0+k}, v{TMP+k}")
    g.e("s_nop 1")
    for sid in sites[:-1]:
        g.e(f"s_cmp_eq_u32 s52, {sid}")
        g.e(f"s_cbranch_scc1 {name}_ret{sid}")
    g.e(f"s_branch {name}_ret{sites[-1]}")


def gen_k2(name, debug=None, stf="", mapmode=0, head=60, LA=12, cpf=0, wpf=False, cpf2=None, fused=False, fine=False):
    global HEADHEX, MAPMODE, XFLAG
    XFLAG = ' sc1' if fused else ''
    HEADHEX = hex(struct.unpack("<I", struct.pack("<f", float(head)))[0])
    MAPMODE = mapmode
    g = Gen()
    if debug:
        g.e("s_memrealtime s[92:93]")
        g.e("s_memrealtime s[64:65]" if debug == 3 else "s_memtime s[64:65]")
    if fused:
        prologue_fused(g, name, fine)
    else:
        prologue(g, name)
    if cpf:
        code_prefetch_setup(g, cpf, 255)
    T = Timeline()
    pstart = {}

    for s in range(36):
        B, sl = s // 4, s % 4
        if sl == 0:
            pstart[B] = len(T.m)
        tbb = TB + 16 * (s % 2)
        hb = HB + 4 * (s % 3)
        for k in range(0 if fused else 4):
            gp = max(-1 if s < 2 else 0, 8 * (s - 2) + k - 2)
            T.fixed[gp].append(Op(f"ds_read_b128 {vr(tbb+4*k, 4)}, v{TBV} offset:{(B*512+sl*64 if fused else s*128)+16*k}", "ds", tag=f"tb{s}.{k}"))
            T.first_read[0] = min(T.first_read.get(0, 10**9), gp)
        e0, d0 = max(-1, 8 * (s - 2) + 4), max(0, 8 * (s - 1) + 5)
        if not fused:
            for i in range(4):
                T.v(f"v_accvgpr_read_b32 v{UT+2*i+1}, a{xraw(s)+i}", e0, d0, vneed=[f"xr{s}"])
            for i in range(4):
                T.v(f"v_lshlrev_b32 v{UT+2*i}, 16, v{UT+2*i+1}", e0, d0)
                T.v(f"v_and_b32 v{UT+2*i+1}, s53, v{UT+2*i+1}", e0, d0)
            for i in range(8):
                T.v(f"v_fma_f32 v{UT+i}, v{UT+i}, v{tbb+i}, v{tbb+8+i}", e0, d0, lneed=[f"tb{s}.{k}" for k in range(4)])
            for i in range(4):
                T.v(f"v_cvt_pk_bf16_f32 v{hb+i}, v{UT+2*i}, v{UT+2*i+1}", e0, d0)
        pend = []
        for jh in range(2):
            for db in range(4):
                idx = len(T.m) + 4 * jh + db
                gp = max(-1, idx - LA)
                off = (B % 4) * 16384 + sl * (2048 if fused else 4096)
                rds = [f"ds_read_b64_tr_b16 {{}}, v{AWQ+4*jh+db} offset:{off+u*1024}" for u in range(2)]
                a, tags = T.frag(rds, [gp, gp], B, idx, f"wq{s}.{jh}.{db}")
                pend.append((a, tags))
        for jh in range(2):
            for db in range(4):
                i8 = 4 * jh + db
                a, _ = pend[i8]
                need = [t for k in range(i8, i8 + 4) for t in pend[k][1]] if db == 0 else []
                acc = SB + 64 * jh + 16 * db
                T.mfma(vr(acc, 16), a, ar(xraw(s), 4) if fused else vr(hb, 4), "0" if s == 0 else vr(acc, 16), need)
    n1 = len(T.m)

    def kread(t, s, gp, last):
        n = t // 2
        off = ((9 + n) % 4) * 16384 + (t % 2) * 8192
        return T.frag([f"ds_read_b128 {{}}, v{AK+s} offset:{off}"], [gp], 9 + n, last, f"k{t}.{s}")

    def vread(t, gi, gps, last):
        n = t // 2 + 1
        db, tt = gi % 4, gi // 4
        off = ((9 + n) % 4) * 16384 + (t % 2) * 8192 + tt * 4096
        rds = [f"ds_read_b64_tr_b16 {{}}, v{AV+db} offset:{off+u*2048}" for u in range(2)]
        return T.frag(rds, gps, 9 + n, last, f"v{t}.{gi}")

    q0 = n1
    for jh in range(2):
        for db in range(4):
            acc = SB + 64 * jh + 16 * db
            fin = n1 - 8 + 4 * jh + db
            for a in range(2):
                dead = q0 + 8 * jh + 2 * db + a - 1
                for r in range(8):
                    T.v(f"v_mul_f32 v{acc+8*a+r}, s55, v{acc+8*a+r}", fin + 3, dead)
                for r in range(4):
                    T.v(f"v_cvt_pk_bf16_f32 v{QB+32*jh+4*(2*db+a)+r}, v{acc+8*a+2*r}, v{acc+8*a+2*r+1}", fin + 3, dead)

    pstart[9] = len(T.m)
    for t in range(2):
        base = len(T.m)
        fr = [kread(t, s, base + s - 8, base + 8 + s) for s in range(8)]
        for j in range(2):
            for s in range(8):
                d = vr(S_(t, j), 16)
                c = d if s else ("0" if t == 0 else vr(CI + 16 * j, 16))
                need = fr[s][1] + (fr[s + 1][1] if s % 2 == 0 else []) if j == 0 else []
                T.mfma(d, fr[s][0], vr(QB + 32 * j + 4 * s, 4), c, need)
    b0, b1 = q0, q0 + 16
    for j in range(2):
        s = S_(0, j)
        e0, d0 = b0 + 8 * j + 7 + 3, b1 + 8 * j - 1
        if j == 1:
            e0 = b1 + 1
        mx = MX if j == 0 else TMP + 6
        T.v(f"v_max3_f32 v{mx}, v{s}, v{s+1}, v{s+2}", e0, d0)
        for r in range(3, 15, 2):
            T.v(f"v_max3_f32 v{mx}, v{mx}, v{s+r}, v{s+r+1}", e0, d0)
        T.v(f"v_max_f32 v{mx}, v{mx}, v{s+15}", e0, d0)
        T.v(f"v_mov_b32 v{mx+1}, v{mx}", e0, d0)
        T.v("s_nop 1", e0, d0)
        T.v(f"v_permlane32_swap_b32 v{mx}, v{mx+1}", e0, d0)
        T.v("s_nop 1", e0, d0)
        T.v(f"v_max_f32 v{mx}, v{mx}, v{mx+1}", e0, d0)
        T.v(f"v_add_f32 v{mx}, {HEADHEX}, v{mx}", e0, d0)
        T.v(f"v_ceil_f32 v{mx}, v{mx}", e0, d0)
        for r in range(16):
            T.v(f"v_sub_f32 v{CI+16*j+r}, 0, v{mx}", e0, d0)
    endit0 = b1 + 15
    for j in range(2):
        for r in range(16):
            T.v(f"v_add_f32 v{S_(0, j)+r}, v{S_(0, j)+r}, v{CI+16*j}", b1 + 1, endit0)

    sites = {0: [], 1: []}

    def softmax(t, e0, last, sid):
        b = t % 2
        ops = []
        for k in range(32):
            j, r = k // 16, k % 16
            ops.append(("e", k, f"v_exp_f32 v{TMP+k%8}, v{S_(b, j)+r}"))
        order = []
        for k in range(32):
            order.append(ops[k][2])
            if k >= 1:
                kk = k - 1
                j, r = kk // 16, kk % 16
                src = LR + 2 * j + (1 - b if r == 0 else b)
                order.append(f"v_add_f32 v{LR+2*j+b}, v{src}, v{TMP+kk%8}")
                if kk % 2 == 1:
                    order.append(f"v_cvt_pk_bf16_f32 v{P_(b, j)+r//2}, v{TMP+(kk-1)%8}, v{TMP+kk%8}")
        order.append(f"v_cvt_pk_bf16_f32 v{P_(b, 1)+7}, v{TMP+30%8}, v{TMP+31%8}")
        order.append(f"v_add_f32 v{LR+2+b}, v{LR+2+b}, v{TMP+31%8}")
        order.append(f"v_max_f32 v{MX}, v{LR+b}, v{LR+2+b}")
        order.append(f"v_cmp_lt_f32 vcc, s54, v{MX}")
        for o in order:
            T.v(o, e0, last + 1)
        T.fixed[last - 3].append(Op(f"s_movk_i32 s52, {sid}", "s"))
        T.tail[last].append(Op(f"s_cbranch_vccnz {name}_rare{b}", "s"))
        T.tail[last].append(Op(f"{name}_ret{sid}", "label", cost=0))
        if sid not in sites[b]:
            sites[b].append(sid)

    softmax(0, b1 + 1, endit0, 100)

    itbase = {}
    for t in range(1, 63):
        base = len(T.m)
        itbase[t] = base
        if t % 2 == 1:
            pstart[9 + (t + 1) // 2] = base
        for gi in range(8):
            i0 = base + 4 * gi
            kf = kread(t + 1, gi, i0 - 9, i0 + 1)
            vf = vread(t - 1, gi, [i0 - 8, i0 - 7], i0 + 3)
            db, tt = gi % 4, gi // 4
            for j in range(2):
                d = vr(S_((t + 1) % 2, j), 16)
                T.mfma(d, kf[0], vr(QB + 32 * j + 4 * gi, 4), d if gi else vr(CI + 16 * j, 16), kf[1] + vf[1] if j == 0 else [])
            for j in range(2):
                d = ar(64 * j + 16 * db, 16)
                T.mfma(d, vf[0], vr(P_((t - 1) % 2, j) + 4 * tt, 4), "0" if (t == 1 and tt == 0) else d)
        n = (t + 1) // 2
        inloop = 2 <= n <= 29
        sid = ((t - 3) % 8) if inloop else 100 + t
        softmax(t, base, base + 31, sid)
        if inloop and (t - 3) % 8 == 7:
            T.tail[base + 31].append(Op("s_sub_u32 s51, s51, 1", "s"))
            T.tail[base + 31].append(Op(f"s_cbranch_scc0 {name}_loop", "s"))

    base = len(T.m)
    itbase[63] = base
    pstart[41] = base
    for gi in range(8):
        i0 = base + 2 * gi
        vf = vread(62, gi, [i0 - 8, i0 - 7], i0 + 1)
        db, tt = gi % 4, gi // 4
        for j in range(2):
            d = ar(64 * j + 16 * db, 16)
            T.mfma(d, vf[0], vr(P_(0, j) + 4 * tt, 4), d, vf[1] if j == 0 else [])
    softmax(63, base, base + 15, 163)
    base = len(T.m)
    b64 = base
    fr = [vread(63, gi, [base + gi - 8, base + gi - 8], base + 8 + gi) for gi in range(8)]
    for j in range(2):
        for gi in range(8):
            db, tt = gi % 4, gi // 4
            d = ar(64 * j + 16 * db, 16)
            need = fr[gi][1] + (fr[gi + 1][1] if gi % 2 == 0 else []) if j == 0 else []
            T.mfma(d, fr[gi][0], vr(P_(1, j) + 4 * tt, 4), d, need)
    p3 = len(T.m)
    INV = CI
    for j in range(2):
        l = LR + 2 * j + 1
        T.v(f"v_mov_b32 v{INV+2+j}, v{l}", b64, p3)
    T.v("s_nop 1", b64, p3)
    for j in range(2):
        T.v(f"v_permlane32_swap_b32 v{LR+2*j+1}, v{INV+2+j}", b64, p3)
    T.v("s_nop 1", b64, p3)
    for j in range(2):
        T.v(f"v_add_f32 v{INV+j}, v{LR+2*j+1}, v{INV+2+j}", b64, p3)
    for j in range(2):
        T.v(f"v_rcp_f32 v{INV+j}, v{INV+j}", b64, p3)
    T.v("s_nop 0", b64, p3)
    NT = CI + 8
    for jh in range(2):
        for ks in range(8):
            db, a = ks // 2, ks % 2
            e0 = b64 + 8 * jh + 4 + db + 3
            dead = p3 + 2 * (8 * jh + ks) - 1
            nt = NT + 8 * (ks % 2)
            for r in range(8):
                T.v(f"v_accvgpr_read_b32 v{nt+r}, a{64*jh+16*db+8*a+r}", e0, dead)
            for r in range(8):
                T.v(f"v_mul_f32 v{nt+r}, v{nt+r}, v{INV+jh}", e0, dead)
            for r in range(4):
                T.v(f"v_cvt_pk_bf16_f32 v{QB+32*jh+4*ks+r}, v{nt+2*r}, v{nt+2*r+1}", e0, dead)

    final_tail = []
    for i in range(9):
        B = 42 + i
        pstart[B] = len(T.m)
        pend = []
        for k in range(32):
            ka, nbl = k // 2, k % 2
            jh, ks = ka // 8, ka % 8
            idx = pstart[B] + k
            off = (B % 4) * 16384 + ks * 2048
            rds = [f"ds_read_b64_tr_b16 {{}}, v{AWO+2*jh+nbl} offset:{off+u*1024}" for u in range(2)]
            la = LA if idx - p3 >= 8 else 8
            pend.append(T.frag(rds, [idx - la, idx - la], B, idx, f"wo{i}.{k}"))
        for k in range(32):
            ka, nbl = k // 2, k % 2
            jh, ks = ka // 8, ka % 8
            acc = SB + 32 * (i % 2) + 16 * nbl
            need = [t for kk in range(k, k + 4) for t in pend[kk][1]] if k % 4 == 0 else []
            T.mfma(vr(acc, 16), pend[k][0], vr(QB + 32 * jh + 4 * ks, 4), "0" if ka == 0 else vr(acc, 16), need)
        E = len(T.m) - 1
        pk = PB + 16 * (i % 2)
        cv, st = [], []
        for nbl in range(2):
            acc = SB + 32 * (i % 2) + 16 * nbl
            for r in range(8):
                cv.append(f"v_cvt_pk_bf16_f32 v{pk+8*nbl+r}, v{acc+2*r}, v{acc+2*r+1}")
            for a in range(2):
                st.append(f"buffer_store_dwordx4 {vr(pk+8*nbl+4*a, 4)}, v{STV}, s[32:35], s56 offen offset:{(2*nbl+a)*256}{stf}")
        if i < 8:
            for c in cv:
                T.v(c, E + 4, E + 12)
            T.fixed[E + 11].append(Op(f"s_movk_i32 s56, {i*1024}", "s"))
            for k, s_ in enumerate(st):
                T.fixed[E + 12 + 2 * k].append(Op(s_, "vm", tag="st"))
        else:
            final_tail = ["s_nop 11", f"s_movk_i32 s56, {i*1024}"] + cv[:4] + [st[0]] + cv[4:8] + [st[1]] + cv[8:12] + [st[2]] + cv[12:] + [st[3]]

    bar = {}
    for B in range(51):
        gp = max(-1, T.first_read[B] - 1)
        bar[B] = gp
        op = Op("s_barrier", "s", vneed=[f"dma{B}"], cost=20)
        if B == 0:
            T.fixed[gp].insert(0, op)
        else:
            T.fixed[gp].append(op)
    for B in range(51):
        grps = []
        if B <= 7 and not fused:
            grps += [xload_ops(s) for s in range(4 * B + 6, min(36, 4 * B + 10))]
        if B + 2 <= 50 and not (fused and B < 2):
            grps += dma_ops(B + 2)
        span = bar.get(B + 1, bar[B] + 32) - bar[B]
        step = 4 if span >= 48 else (2 if span >= 24 else 1)
        gp = bar[B] + (4 if step == 4 else 2)
        if B == 0:
            gp, step = 1, 1
        for grp in grps:
            for op in grp:
                if op.kind == "vm":
                    T.fixed[gp].append(op)
                    gp += step
                else:
                    T.fixed[gp - 1].append(op)
    if cpf:
        T.fixed[18].append(Op(f"global_load_dword v254, v255, s[60:61]", "vm", tag="cpf"))
    if wpf:
        gp = bar[9] + 8
        nb = 576 * 9216
        pre = []
        for k, (d, b) in enumerate(((24, 96), (28, 98), (36, 100))):
            pre += [f"s_mov_b32 s{d}, s{b}", f"s_mov_b32 s{d+1}, s{b+1}", f"s_mov_b32 s{d+2}, {nb}", f"s_mov_b32 s{d+3}, 0x20000"]
        pre += ["s_lshl_b32 s58, s2, 15", "s_lshl_b32 s59, s46, 13", "s_add_u32 s58, s58, s59",
                "s_lshl_b32 s59, s45, 2", "s_add_u32 s59, s59, s46", "s_mul_i32 s59, s59, 4608"]
        for k, t_ in enumerate(pre):
            T.tail[gp + k // 2].append(Op(t_, "s"))
        T.tail[gp + 9].append(Op(f"v_lshlrev_b32 v254, 3, v{XHV}", "v"))
        T.fixed[gp + 11].append(Op(f"buffer_load_dword v255, v254, s[20:23], s59 offen", "vm", tag="wpf"))
        for k, d in enumerate((24, 28, 36)):
            T.fixed[gp + 12 + k].append(Op(f"buffer_load_dword v255, v254, s[{d}:{d+3}], s58 offen", "vm", tag="wpf"))
        if cpf2:
            lab, nch = cpf2
            T.tail[gp + 10].append(Op(f"{name}_pc", "label", cost=0))
            T.tail[gp + 10].insert(0, Op("s_getpc_b64 s[60:61]", "s"))
            T.tail[gp + 11].append(Op(f"s_add_u32 s60, s60, {lab}-{name}_pc", "s"))
            T.tail[gp + 11].append(Op("s_addc_u32 s61, s61, 0", "s"))
            T.tail[gp + 12].append(Op(f"s_min_u32 s62, s2, {nch-1}", "s"))
            T.tail[gp + 12].append(Op("s_lshl_b32 s62, s62, 13", "s"))
            T.tail[gp + 13].append(Op("v_add_u32 v253, s62, v254", "v"))
            T.fixed[gp + 15].append(Op("global_load_dword v255, v253, s[60:61]", "vm", tag="wpf"))
    T.tail[-1].append(Op("s_nop 1", "s"))
    if debug:
        pts = [-1, 0, pstart[3], pstart[6], n1 - 1, pstart[10], pstart[11] - 1, pstart[39], pstart[41], p3, pstart[46], len(T.m) - 1]
        for k, gp in enumerate(pts[:2] if fine else pts):
            T.fixed[gp].append(Op(f"{'s_memrealtime' if debug == 3 else 's_memtime'} s[{66+2*k}:{67+2*k}]", "s"))
    marks, stats = {}, {}
    schedule(g, T.m, T.fixed, T.tail, T.q, marks=marks, stats=stats)
    for ln in final_tail:
        if ln.startswith("buffer"):
            g.vm(ln)
        else:
            g.e(ln)
    if debug:
        g.e("s_waitcnt vmcnt(0)")
        g.e("s_memrealtime s[90:91]" if debug == 3 else "s_memtime s[90:91]")
        g.e("s_memrealtime s[94:95]")
        g.e("s_waitcnt lgkmcnt(0)")
        srd(g, 8, 40, 0x8000000, 0x100000)
        for k in range(16):
            g.e(f"v_mov_b32 v{48+k}, s{64+2*k}")
        g.e("s_lshl_b32 s58, s2, 2")
        g.e("s_add_u32 s58, s58, s46")
        g.e("s_lshl_b32 s58, s58, 6")
        g.e("v_mov_b32 v1, s58")
        for k in range(4):
            g.vm(f"buffer_store_dwordx4 v[{48+4*k}:{51+4*k}], v1, s[8:11], 0 offen offset:{16*k}")
    g.label(f"{name}_end")
    g.e("s_endpgm")
    linear = list(g.seq)
    probs = check_hazards(linear, name)

    blocks = [pstart[9 + n] for n in range(2, 31, 4)]
    segs = [linear[marks[blocks[k]]:marks[blocks[k + 1]]] for k in range(7)]
    ref = [i.text for i in segs[0]]
    for k in range(1, 7):
        assert [i.text for i in segs[k]] == ref, f"loop block {k} differs"
    out = linear[:marks[blocks[0]]] + [Ins(".p2align 4"), Ins(f"{name}_loop:")] + segs[0] + linear[marks[blocks[7]]:]
    r = Gen()
    for b in range(2):
        rare_path(r, name, b, sites[b])
    probs += check_hazards(r.seq, name + "_rare")
    text = g.text(out) + r.text()
    over = {k: v for k, v in stats.items() if v > 24}
    info = dict(n_mfma=len(T.m), max_lq=g.max_lq, est_cycles=sum(max(32, 8 + v) for k, v in stats.items() if k >= 0),
                n_over=len(over), loop_over=sum(1 for k in over if blocks[0] <= k < blocks[1]),
                loop_cyc=sum(max(32, 8 + stats[k]) for k in range(blocks[0], blocks[1])))
    cum = lambda a, b: sum(max(32, 8 + stats[k]) for k in range(a, b))
    info["phases"] = dict(p1=cum(0, n1), trans1=cum(n1, pstart[11]), tail=cum(pstart[39], p3), p3=cum(p3, len(T.m)))
    return text, probs, info
```

```python
import struct
from collections import defaultdict
from asmlib import *
from ksmall import srd, ARG, XH_OFF, TAB_OFF, FLAG_OFF, PART_OFF, ACT_BYTES
import kattn
from kattn import vr, ar, xraw, remap, code_prefetch_setup, THRESH, CSCALE, TAB_LDS, LDS_BYTES
import kffn16
from kffn16 import TL16, out_proj, stamp_end

M32 = "v_mfma_f32_32x32x16_bf16"
AK, AV, DK, DV, DWO, AWO, STV, MX, LR = 8, 12, 20, 24, 26, 30, 38, 39, 40
SB, PB, CI, TMP, QB = 48, 112, 144, 160, 176
NTMP = 12
ONES, LACC = 172, 192
LV = (40, 44, 240, 244)
LOLD = 248
DWQ, AWQ, XHV, TBV = 240, 244, 252, 253
UT, TB, HB = 40, 176, 208
RING, NRING = 128, 16


def S_(b, qb, kb=0):
    return SB + 32 * b + 8 * qb + 4 * kb


def P_(b, qb):
    return PB + 16 * b + 4 * qb


def O_(qb, db):
    return 32 * qb + 4 * db


SLOT5 = False
AWE = (8, 9, 10, 11, 20, 21, 22, 23)


def wo_slot(B):
    if not SLOT5:
        return B % 4
    return (None, 2, 3, 0, 1)[(B - 42) % 5]


def dma_ops(B):
    slot = B % 4
    tag = f"dma{B}"
    groups = []
    if B < 9 or B >= 42:
        for jh in range(2):
            so = B * 64 * 8192 + jh * 256 if B < 9 else jh * 128 * 1152 + (B - 42) * 128
            vb, sr = (DWQ, 16) if B < 9 else (DWO, 20)
            lds = jh * 65536 + slot * 16384
            if B >= 42:
                lds = 131072 + jh * 16384 if wo_slot(B) is None else jh * 65536 + wo_slot(B) * 16384
            grp = [Op(f"s_add_u32 m0, s47, {lds}", "s"), Op(f"s_mov_b32 s50, {so}", "s")]
            grp += [Op(f"buffer_load_dwordx4 v{vb+j}, s[{sr}:{sr+3}], s50 offen offset:{j*1024} lds", "vm", tag=tag) for j in range(4)]
            groups.append(grp)
    else:
        n = B - 9
        if n >= 1:
            grp = [Op(f"s_add_u32 m0, s47, {65536 + slot*16384}", "s")]
            grp += [Op(f"buffer_load_dwordx4 v{DV+j%2}, s[12:15], s49 offen offset:{j*1024} lds", "vm", tag=tag) for j in range(4)]
            grp += [Op("s_add_u32 s49, s49, 0x4000", "post")]
            groups.append(grp)
        if n <= 31:
            grp = [Op(f"s_add_u32 m0, s47, {slot*16384}", "s")]
            grp += [Op(f"buffer_load_dwordx4 v{DK+j}, s[8:11], s48 offen offset:{j*1024} lds", "vm", tag=tag) for j in range(4)]
            grp += [Op("s_add_u32 s48, s48, 0x4000", "post")]
            groups.append(grp)
    return groups


def late_setup(g, fused=False):
    g.e("s_lshl_b32 s58, s44, 19")
    srd(g, 8, 4, "s58", 524288)
    srd(g, 12, 6, "s58", 524288)
    g.e(f"s_mul_i32 s58, s44, {256*1152}")
    srd(g, 20, 38, "s58", 256 * 1152)
    g.e(f"s_mul_i32 s58, s44, {ACT_BYTES}")
    g.e(f"s_mul_i32 s59, s45, {16*9216}")
    g.e("s_add_u32 s58, s58, s59")
    g.e(f"s_add_u32 s58, s58, {PART_OFF}")
    srd(g, 32, 40, "s58", 16 * 9216)
    g.lines(f"""
    s_mov_b32 s48, 0
    s_mov_b32 s49, 0
    s_mov_b32 s51, 6
    s_mov_b32 s54, {THRESH:#x}
    s_mov_b32 s55, {CSCALE:#x}
    v_lshrrev_b32 v1, 5, v2
    v_bfe_u32 v6, v2, 2, 2
    v_and_b32 v7, 3, v2
    v_bfe_u32 v46, v2, 4, 1
    v_lshlrev_b32 v46, 5, v46
    v_lshrrev_b32 v40, 1, v7
    v_and_b32 v41, 1, v7
    v_lshl_add_u32 v40, v41, 1, v40
    v_lshl_add_u32 v46, v40, 3, v46
    v_lshl_add_u32 v43, v1, 3, v6
    """)
    for db in range(4):
        g.e(f"v_xor_b32 v41, {db}, v6")
        g.e("v_lshlrev_b32 v41, 6, v41")
        g.e("v_lshl_add_u32 v44, v43, 8, v41")
        g.e(f"v_add_u32 v{AWQ+db}, v44, v46")
        g.e(f"v_add_u32 v{AWQ+4+db}, 0x10000, v{AWQ+db}")
    g.e(f"v_lshlrev_b32 v{TBV}, 6, v1")
    g.e(f"v_add_u32 v{TBV}, {TAB_LDS}, v{TBV}")
    for ks in range(4):
        g.e(f"v_add_u32 v41, {4*ks}, v3")
        g.e("v_xor_b32 v41, v41, v4")
        g.e("v_lshlrev_b32 v41, 4, v41")
        g.e(f"v_lshl_add_u32 v{AK+ks}, v4, 8, v41")
        g.e("v_lshl_add_u32 v41, v3, 8, v41")
        g.e(f"v_add_u32 v{DK+ks}, s47, v41")
    g.e("v_lshrrev_b32 v42, 2, v2")
    g.e("v_lshlrev_b32 v7, 3, v7")
    g.e("v_lshl_add_u32 v43, v42, 8, v7")
    g.e("v_add_u32 v43, 0x10000, v43")
    g.e("v_and_b32 v44, 7, v42")
    for db in range(8):
        g.e(f"v_xor_b32 v41, {db}, v44")
        g.e(f"v_lshl_add_u32 v{AV+db}, v41, 5, v43")
    for par in range(2):
        g.e(f"v_add_u32 v41, {4*par}, v3")
        g.e("v_lshlrev_b32 v41, 1, v41")
        g.e("v_xor_b32 v41, v41, v4")
        g.e("v_lshlrev_b32 v41, 4, v41")
        g.e("v_lshl_add_u32 v41, v3, 8, v41")
        g.e(f"v_add_u32 v{DV+par}, s47, v41")
    g.e("v_lshl_add_u32 v43, v42, 7, v7")
    g.e("v_bfe_u32 v44, v42, 1, 2")
    for nb in range(4):
        g.e(f"v_xor_b32 v41, {nb}, v44")
        g.e(f"v_lshl_add_u32 v{AWO+nb}, v41, 5, v43")
        g.e(f"v_add_u32 v{AWO+4+nb}, 0x10000, v{AWO+nb}")
    g.lines(f"""
    v_lshrrev_b32 v41, 3, v2
    s_lshl_b32 s58, s46, 5
    v_add_u32 v41, s58, v41
    v_mul_u32_u24 v41, 1152, v41
    v_and_b32 v44, 7, v2
    v_lshlrev_b32 v45, 1, v3
    v_xor_b32 v45, v45, v44
    v_lshl_add_u32 v{DWO}, v45, 4, v41
    """)
    for j in range(1, 4):
        g.e(f"v_add_u32 v{DWO+j}, {j*(9216-1024)}, v{DWO}")
    g.lines(f"""
    v_bfe_u32 v41, v2, 3, 1
    s_lshl_b32 s58, s46, 2
    v_add_u32 v41, s58, v41
    v_mul_u32_u24 v41, 9216, v41
    v_lshl_add_u32 v41, v3, 7, v41
    v_lshl_add_u32 v{STV}, v44, 4, v41
    """)


def max_ops(s, mx, t):
    o = [f"v_max3_f32 v{mx}, v{s}, v{s+1}, v{s+2}", f"v_max3_f32 v{mx}, v{mx}, v{s+3}, v{s+4}",
         f"v_max3_f32 v{mx}, v{mx}, v{s+5}, v{s+6}", f"v_max_f32 v{mx}, v{mx}, v{s+7}"]
    for sw in ("v_permlane16_swap_b32", "v_permlane32_swap_b32"):
        o += [f"v_mov_b32 v{t}, v{mx}", f"{sw} v{mx}, v{t}", f"v_max_f32 v{mx}, v{mx}, v{t}"]
    return o


def rare_path(g, name, b, sites, headhex, ones, lchk=False):
    if lchk:
        for sid in sites:
            g.label(f"{name}_stub{sid}")
            g.e(f"s_movk_i32 s52, {sid}")
            g.e(f"s_branch {name}_rare{b}")
    g.label(f"{name}_rare{b}")
    g.e("s_nop 15")
    mx, mi = TMP + 8, TMP + 9
    for qb in range(4):
        s, s2, p = S_(b, qb), S_(1 - b, qb), P_(b, qb)
        lo, ln = LR + 2 * qb + (1 - b), LR + 2 * qb + b
        for o in max_ops(s, mx, mi):
            g.e(o)
        g.e(f"v_add_f32 v{mx}, {headhex}, v{mx}")
        g.e(f"v_max_f32 v{mx}, 0, v{mx}")
        g.e(f"v_ceil_f32 v{mx}, v{mx}")
        g.e(f"v_cvt_i32_f32 v{mi}, v{mx}")
        g.e(f"v_sub_u32 v{mi}, 0, v{mi}")
        if not ones:
            g.e(f"v_ldexp_f32 v{ln}, v{lo}, v{mi}")
        for r in range(4):
            g.e(f"v_sub_f32 v{CI+4*qb+r}, v{CI+4*qb+r}, v{mx}")
        for r in range(8):
            g.e(f"v_sub_f32 v{s2+r}, v{s2+r}, v{mx}")
            g.e(f"v_sub_f32 v{s+r}, v{s+r}, v{mx}")
        for r in range(8):
            g.e(f"v_exp_f32 v{s+r}, v{s+r}")
        if not ones:
            for r in range(8):
                g.e(f"v_add_f32 v{ln}, v{ln}, v{s+r}")
        for r in range(4):
            g.e(f"v_cvt_pk_bf16_f32 v{p+r}, v{s+2*r}, v{s+2*r+1}")
        if lchk:
            for r in range(4):
                g.e(f"v_ldexp_f32 v{LV[qb]+r}, v{LOLD+qb}, v{mi}")
            g.e(f"{kffn16.MF} {vr(LV[qb], 4)}, {vr(ONES, 4)}, {vr(p, 4)}, {vr(LV[qb], 4)}")
        regs = [32 * qb + k for k in range(32)] + ([LACC + 4 * qb + k for k in range(4)] if ones and not lchk else [])
        for r0 in range(0, len(regs), 8):
            ch = regs[r0:r0 + 8]
            for k, a_ in enumerate(ch):
                g.e(f"v_accvgpr_read_b32 v{TMP+k}, a{a_}")
            for k, a_ in enumerate(ch):
                g.e(f"v_ldexp_f32 v{TMP+k}, v{TMP+k}, v{mi}")
            for k, a_ in enumerate(ch):
                g.e(f"v_accvgpr_write_b32 a{a_}, v{TMP+k}")
    g.e("s_nop 1")
    for sid in sites[:-1]:
        g.e(f"s_cmp_eq_u32 s52, {sid}")
        g.e(f"s_cbranch_scc1 {name}_ret{sid}")
    g.e(f"s_branch {name}_ret{sites[-1]}")


def gen_k2(name, debug=None, stf=" sc1", mapmode=0, head=90, LA=12, cpf=0, wpf=False, cpf2=None, ones=False, wide=12, deep=False, spread=0, tabscale=False, p3st=False, align=4, pad=0, split=False, slot5=False, early=0, chain=False, lchk=False, l2pf=False, nost=False):
    headhex = hex(struct.unpack("<I", struct.pack("<f", float(head)))[0])
    kattn.MAPMODE = mapmode
    kffn16.SPREAD = spread
    kattn.XFLAG = ""
    kattn.EARLY = early
    global SLOT5
    SLOT5 = slot5
    g = Gen()
    if debug:
        g.e("s_memrealtime s[92:93]")
        g.e("s_memrealtime s[64:65]" if debug == 3 else "s_memtime s[64:65]")
    if split == 2:
        g.e("s_memrealtime s[92:93]")
    saved = kattn.late_setup
    kattn.late_setup = late_setup
    kattn.prologue(g, name)
    kattn.late_setup = saved
    if cpf:
        code_prefetch_setup(g, cpf, 255)
    T = TL16(RING, NRING)
    budget = {}
    pstart = {}

    def m32(d, a, b, c, lneed=()):
        T.m.append(Op(f"{M32} {d}, {a}, {b}, {c}", "m", lneed=lneed))

    for s in range(36):
        B, sl = s // 4, s % 4
        if sl == 0:
            pstart[B] = len(T.m)
        tbb, hb = TB + 16 * (s % 2), HB + 4 * (s % 3)
        for k in range(4):
            gp = max(-1 if s < 2 else 0, 8 * (s - 2) + k - 2)
            T.fixed[gp].append(Op(f"ds_read_b128 {vr(tbb+4*k, 4)}, v{TBV} offset:{s*128+16*k}", "ds", tag=f"tb{s}.{k}"))
            T.first_read[0] = -1
        e0, d0 = max(-1, 8 * (s - 2) + 4), max(0, 8 * (s - 1) + 5)
        for i in range(4):
            T.v(f"v_accvgpr_read_b32 v{UT+2*i+1}, a{xraw(s)+i}", e0, d0, vneed=[f"xr{s}"])
        for i in range(4):
            T.v(f"v_lshlrev_b32 v{UT+2*i}, 16, v{UT+2*i+1}", e0, d0)
            T.v(f"v_and_b32 v{UT+2*i+1}, s53, v{UT+2*i+1}", e0, d0)
        for i in range(8):
            T.v(f"v_fma_f32 v{UT+i}, v{UT+i}, v{tbb+i}, v{tbb+8+i}", e0, d0, lneed=[f"tb{s}.{k}" for k in range(4)])
        for i in range(4):
            T.v(f"v_cvt_pk_bf16_f32 v{hb+i}, v{UT+2*i}, v{UT+2*i+1}", e0, d0)
        pend = []
        for i8 in range(8):
            jh, db = i8 // 4, i8 % 4
            idx = len(T.m) + i8
            off = (B % 4) * 16384 + sl * 4096
            rds = [f"ds_read_b64_tr_b16 {{}}, v{AWQ+4*jh+db} offset:{off+u*1024}" for u in range(2)]
            gp = max(-1, idx - LA)
            pend.append(T.frag(rds, gp - 1, B, idx, f"wq{s}.{i8}", lo=gp))
        for i8 in range(8):
            jh, db = i8 // 4, i8 % 4
            need = [t for k in range(i8, i8 + 4) for t in pend[k][1]] if db == 0 else []
            acc = SB + 64 * jh + 16 * db
            m32(vr(acc, 16), pend[i8][0], vr(hb, 4), "0" if s == 0 else vr(acc, 16), need)
    n1 = len(T.m)

    def kread(t, kb, ks, gp, last):
        n = t // 2
        off = ((9 + n) % 4) * 16384 + (t % 2) * 8192 + kb * 4096
        return T.frag([f"ds_read_b128 {{}}, v{AK+ks} offset:{off}"], gp, 9 + n, last, f"k{t}.{kb}.{ks}")

    def vread(t, db, gp, last, step=2):
        n = t // 2 + 1
        off = ((9 + n) % 4) * 16384 + (t % 2) * 8192
        e = T.ring_i % NRING
        T.ring_i += 1
        assert T.ring_last[e] <= gp, (T.ring_last[e], gp)
        T.ring_last[e] = last
        base = RING + 4 * e
        for u in range(2):
            T.fixed[gp + step * u].append(Op(f"ds_read_b64_tr_b16 {ar(base+2*u, 2)}, v{AV+db} offset:{off+u*4096}", "ds", tag=f"v{t}.{db}.{u}"))
        T.first_read[9 + n] = min(T.first_read.get(9 + n, 10**9), gp)
        return ar(base, 4), [f"v{t}.{db}.0", f"v{t}.{db}.1"]

    q0 = n1
    for jh in range(2):
        for db in range(4):
            acc = SB + 64 * jh + 16 * db
            fin = n1 - 8 + 4 * jh + db
            dead = q0 - 1 if jh == 0 else q0 + 16 + 2 * db - 1
            X, Y = QB + 32 * jh + 4 * db, QB + 32 * jh + 16 + 4 * db
            for r in range(0 if tabscale else 16):
                T.v(f"v_mul_f32 v{acc+r}, s55, v{acc+r}", fin + 3, dead)
            for r in range(4):
                T.v(f"v_cvt_pk_bf16_f32 v{X+r}, v{acc+2*r}, v{acc+2*r+1}", fin + 3, dead)
                T.v(f"v_cvt_pk_bf16_f32 v{Y+r}, v{acc+8+2*r}, v{acc+8+2*r+1}", fin + 3, dead)
            for sw in ("v_permlane32_swap_b32", "v_permlane16_swap_b32"):
                for r in range(4):
                    T.v(f"{sw} v{X+r}, v{Y+r}", fin + 3, dead)

    pstart[9] = len(T.m)
    for t in range(2):
        base = len(T.m)
        order = [(ks, kb) for ks in range(4) for kb in range(2)] if t == 0 else [(ks, kb) for kb in range(2) for ks in range(4)]
        fr = {}
        for k, (ks, kb) in enumerate(order):
            fr[(ks, kb)] = kread(t, kb, ks, base + 2 * k - (8 if t == 0 else 14), base + 16 + 2 * k + 1)
        for jh in range(2):
            for k, (ks, kb) in enumerate(order):
                for b in range(2):
                    qb = 2 * jh + b
                    d = vr(S_(t, qb, kb), 4)
                    c = d if ks else ("0" if t == 0 else vr(CI + 4 * qb, 4))
                    need = []
                    if jh == 0 and b == 0 and k % 2 == 0:
                        need = fr[order[k]][1] + fr[order[k + 1]][1]
                    T.mfma(d, fr[(ks, kb)][0], vr(QB + 16 * qb + 4 * ks, 4), c, need)
    b0, b1 = q0, q0 + 32
    for k in ([LV[q] + r for q in range(4) for r in range(4)] if lchk else range(LR, LR + 8)):
        T.v(f"v_mov_b32 v{k}, 0", b0, b1)
    if ones:
        for k in range(4):
            T.v(f"v_mov_b32 v{ONES+k}, 0x3f803f80", b0, b1)
    for qb in range(4):
        jh = qb // 2
        e0, d0 = b0 + 16 * jh + 15 + 3, b1 + 16 * jh - 1
        mx = TMP + 2 * qb
        for o in max_ops(S_(0, qb), mx, mx + 1) + [f"v_add_f32 v{mx}, {headhex}, v{mx}", f"v_ceil_f32 v{mx}, v{mx}"]:
            T.v(o, e0, d0)
        for r in range(4):
            T.v(f"v_sub_f32 v{CI+4*qb+r}, 0, v{mx}", e0, d0)
    endit0 = b1 + 31
    for qb in range(4):
        for r in range(8):
            T.v(f"v_add_f32 v{S_(0, qb)+r}, v{S_(0, qb)+r}, v{CI+4*qb}", b1 + 3, endit0 - 1)

    sites = {0: [], 1: []}

    def softmax_old(t, e0, last, sid):
        b = t % 2
        el = [(qb, kb, r) for kb in range(2) for qb in range(4) for r in range(4)]
        order = []
        for k, (qb, kb, r) in enumerate(el):
            tr = TMP + k % NTMP
            order.append(f"v_exp_f32 v{tr}, v{S_(b, qb, kb)+r}")
            if ones:
                if k % 2 == 1:
                    pv = TMP + (k - 1) % NTMP
                    order.append(f"v_max3_f32 v{MX}, v{pv}, v{tr}, v{pv if k == 1 else MX}")
            else:
                src = LR + 2 * qb + (1 - b if (kb == 0 and r == 0) else b)
                order.append(f"v_add_f32 v{LR+2*qb+b}, v{src}, v{tr}")
            if k % 2 == 1:
                order.append(f"v_cvt_pk_bf16_f32 v{P_(b, qb)+2*kb+r//2}, v{TMP+(k-1)%NTMP}, v{tr}")
        if not ones:
            order.append(f"v_max3_f32 v{MX}, v{LR+b}, v{LR+2+b}, v{LR+4+b}")
            order.append(f"v_max_f32 v{MX}, v{MX}, v{LR+6+b}")
        order.append(f"v_cmp_lt_f32 vcc, s54, v{MX}")
        for o in order:
            T.v(o, e0, last + 1)
        T.fixed[e0 if t not in (0,) else e0 + 1].append(Op(f"s_movk_i32 s52, {sid}", "s"))
        T.tail[last].append(Op(f"s_cbranch_vccnz {name}_rare{b}", "s"))
        T.tail[last].append(Op(f"{name}_ret{sid}", "label", cost=0))
        if sid not in sites[b]:
            sites[b].append(sid)

    def softmax(t, e0, last, sid, sums=None):
        if not lchk:
            return softmax_old(t, e0, last, sid)
        b = t % 2
        for qb in range(4):
            T.v(f"v_mov_b32 v{LOLD+qb}, v{LV[qb]}", e0, sums[qb] - 1)
        el = [(0, 0), (1, 0), (0, 1), (2, 0), (1, 1), (3, 0), (2, 1), (3, 1)]
        k = 0
        for (qb, kb) in el:
            for r in range(4):
                tr = TMP + k % NTMP
                T.v(f"v_exp_f32 v{tr}, v{S_(b, qb, kb)+r}", e0, sums[qb] - 1)
                if k % 2 == 1:
                    T.v(f"v_cvt_pk_bf16_f32 v{P_(b, qb)+2*kb+r//2}, v{TMP+(k-1)%NTMP}, v{tr}", e0, sums[qb] - 1)
                k += 1
        T.v(f"v_max3_f32 v{MX}, v{LV[0]}, v{LV[1]}, v{LV[2]}", min(sums[2] + 1, last), last + 1)
        T.v(f"v_max_f32 v{MX}, v{MX}, v{LV[3]}", min(sums[3] + 1, last), last + 1)
        T.v(f"v_cmp_lt_f32 vcc, s54, v{MX}", min(sums[3] + 1, last), last + 1)
        T.tail[last].append(Op(f"s_cbranch_vccnz {name}_stub{sid}", "s"))
        T.tail[last].append(Op(f"{name}_ret{sid}", "label", cost=0))
        if sid not in sites[b]:
            sites[b].append(sid)

    def lsum_now(t, qb):
        d = vr(LV[qb], 4)
        return T.mfma(d, vr(ONES, 4), vr(P_(t % 2, qb), 4), d)

    if lchk:
        sums0 = [lsum_now(0, qb) for qb in range(4)]
        endit0 = len(T.m) - 1
    softmax(0, b1 + 3, endit0, 100, sums0 if lchk else None)

    def lsum(t, qb):
        d = ar(LACC + 4 * qb, 4)
        T.mfma(d, vr(ONES, 4), vr(P_(t % 2, qb), 4), "0" if t == 0 else d)

    GL = 8
    oddend = []
    allpos = []
    for t in range(1, 63):
        base = len(T.m)
        if t % 2 == 1:
            pstart[9 + (t + 1) // 2] = base
        if lchk:
            after = {3: 0, 4: 1, 5: 2, 6: 3}
            pos = [base + GL * gi + sum(1 for q in after if q < gi) for gi in range(9)]
        else:
            pos = [base + GL * gi + ((gi + 1) // 2 if ones else 0) for gi in range(9)]
        sums = {}
        frs = []
        for gi in range(8):
            i0 = pos[gi]
            nb_ = 3 if deep else 2
            if gi >= nb_:
                back = pos[gi - nb_]
            elif t == 1:
                back = i0 - 8 * nb_
            else:
                back = prevpos[8 + gi - nb_]
            kb, ks = gi // 4, gi % 4
            kf = kread(t + 1, kb, ks, back, i0 + 3)
            vf = vread(t - 1, gi, back + 2, i0 + 8, step=0 if lchk else 2)
            frs.append((kf, vf))
            for k in (0, 2, 4):
                budget[back + k] = 8 if ones else wide
        for gi in range(8):
            kb, ks = gi // 4, gi % 4
            kf, vf = frs[gi]
            need = kf[1] + vf[1]
            if lchk:
                need = (need + frs[gi + 1][0][1] + frs[gi + 1][1][1]) if gi % 2 == 0 else []
            for qb in range(4):
                d = vr(S_((t + 1) % 2, qb, kb), 4)
                T.mfma(d, kf[0], vr(QB + 16 * qb + 4 * ks, 4), d if ks else vr(CI + 4 * qb, 4), need if qb == 0 else [])
            for qb in range(4):
                d = ar(O_(qb, gi), 4)
                T.mfma(d, vf[0], vr(P_((t - 1) % 2, qb), 4), "0" if t == 1 else d)
            if lchk and gi in after:
                sums[after[gi]] = lsum_now(t, after[gi])
            elif ones and not lchk and gi % 2 == 0:
                lsum(t - 1, gi // 2)
        prevpos = pos
        allpos += pos[:8]
        oddend += sorted([pos[gi + 1] - 1 for gi in (0, 2, 4, 6)] + [pos[7] + 3, pos[7] + 5])
        last = len(T.m) - 1
        n = (t + 1) // 2
        inloop = 2 <= n <= 29
        sid = ((t - 3) % 8) if inloop else 100 + t
        softmax(t, base, last, sid, sums)
        if inloop and (t - 3) % 8 == 7:
            T.tail[last].append(Op("s_sub_u32 s51, s51, 1", "s"))
            T.tail[last].append(Op(f"s_cbranch_scc0 {name}_loop", "s"))

    base = len(T.m)
    pstart[41] = base
    for gi in range(8):
        i0 = len(T.m)
        vf = vread(62, gi, i0 - 14, i0 + 3)
        for qb in range(4):
            d = ar(O_(qb, gi), 4)
            T.mfma(d, vf[0], vr(P_(0, qb), 4), d, vf[1] if qb == 0 else [])
    if lchk:
        sums = [lsum_now(63, qb) for qb in range(4)]
    elif ones:
        for qb in range(4):
            lsum(62, qb)
    softmax(63, base, len(T.m) - 1, 163, sums if lchk else None)
    base = len(T.m)
    b64 = base
    if ones and not lchk:
        for qb in range(4):
            lsum(63, qb)
        base = len(T.m)
    fr = [vread(63, gi, base + 2 * gi - 14, base + 16 + 2 * gi + 1, step=1) for gi in range(8)]
    for jh in range(2):
        for gi in range(8):
            for b in range(2):
                qb = 2 * jh + b
                d = ar(O_(qb, gi), 4)
                need = fr[gi][1] + fr[gi + 1][1] if (jh == 0 and b == 0 and gi % 2 == 0) else []
                T.mfma(d, fr[gi][0], vr(P_(1, qb), 4), d, need)
    p3 = len(T.m)
    INV = CI
    if slot5:
        for k in range(8):
            T.tail[pstart[41] + 2 + k].append(Op(f"v_add_u32 v{AWE[k]}, {131072 + (k//4)*16384}, v{AWO+k%4}", "v"))
    if lchk:
        for qb in range(4):
            T.v(f"v_mov_b32 v{INV+qb}, v{LV[qb]}", b64, p3)
    elif ones:
        for qb in range(4):
            T.v(f"v_accvgpr_read_b32 v{INV+qb}, a{LACC+4*qb}", b64 + 8, p3)
    else:
        for sw in ("v_permlane16_swap_b32", "v_permlane32_swap_b32"):
            for qb in range(4):
                T.v(f"v_mov_b32 v{INV+4+qb}, v{LR+2*qb+1}", b64, p3)
            for qb in range(4):
                T.v(f"{sw} v{LR+2*qb+1}, v{INV+4+qb}", b64, p3)
            for qb in range(4):
                T.v(f"v_add_f32 v{LR+2*qb+1}, v{LR+2*qb+1}, v{INV+4+qb}", b64, p3)
        for qb in range(4):
            T.v(f"v_mov_b32 v{INV+qb}, v{LR+2*qb+1}", b64, p3)
    for qb in range(4):
        T.v(f"v_rcp_f32 v{INV+qb}, v{INV+qb}", b64, p3)
    for jh in range(2):
        for ks in range(4):
            for b in range(2):
                qb = 2 * jh + b
                e0 = base + 16 * jh + 4 * ks + 3 + 3
                dead = p3 + 8 * (4 * jh + ks) - 1
                nt = TMP if b == 0 else CI + 8
                for r in range(8):
                    T.v(f"v_accvgpr_read_b32 v{nt+r}, a{O_(qb, 2*ks)+r}", e0, dead)
                for r in range(8):
                    T.v(f"v_mul_f32 v{nt+r}, v{nt+r}, v{INV+qb}", e0, dead)
                for r in range(4):
                    T.v(f"v_cvt_pk_bf16_f32 v{QB+16*qb+4*ks+r}, v{nt+2*r}, v{nt+2*r+1}", e0, dead)

    final_tail = []
    for i in range(9):
        B = 42 + i
        pstart[B] = len(T.m)
        final_tail = out_proj(
            T, i, B, lambda nb, kk, u: (f"ds_read_b64_tr_b16 {{}}, v{AWE[4*(kk//4)+nb]} offset:{(kk%4)*4096+u*2048}" if wo_slot(B) is None else
                                        f"ds_read_b64_tr_b16 {{}}, v{AWO+4*(kk//4)+nb} offset:{wo_slot(B)*16384+(kk%4)*4096+u*2048}"),
            8, lambda b, kk: vr(QB + 16 * (2 * (kk // 4) + b) + 4 * (kk % 4), 4), SB + 32 * (i % 2), PB + 16 * (i % 2),
            lambda idx: 24 if idx - p3 >= 16 else 14, stf, i == 8)

    if nost:
        for k_ in list(T.fixed):
            T.fixed[k_] = [o for o in T.fixed[k_] if not str(o.tag).startswith("st")]
    bar = {}
    for B in range(51):
        gp = max(-1, T.first_read[B] - 1)
        bar[B] = gp
        op = Op("s_barrier", "s", vneed=[f"dma{B}"] + (["st5"] if split and B == 50 else []), cost=20)
        if B == 0:
            T.fixed[gp].insert(0, op)
        else:
            T.tail[gp].append(op)
    lastvm = -10
    for B in range(51):
        grps = []
        if early:
            xs = {0: (10, 16), 1: (16, 28), 2: (28, 32), 3: (32, 36)}.get(B)
            if xs:
                grps += [kattn.xload_ops(s) for s in range(*xs)]
            if B == 0:
                grps += dma_ops(3)
            elif B >= 2 and B + 2 <= 50:
                grps += dma_ops(B + 2)
        else:
            if B <= 7:
                grps += [kattn.xload_ops(s) for s in range(4 * B + 6, min(36, 4 * B + 10))]
            if slot5 and B >= 39:
                for tg in ({39: (41, 42)}.get(B, (B + 3,))):
                    if tg <= 50:
                        grps += dma_ops(tg)
            elif B + 2 <= 50:
                grps += dma_ops(B + 2)
        if B < 9:
            gp, step, back = (1, 1, 1) if B == 0 else (bar[B] + 2, 2, 1)
        elif B == 9:
            gp, step, back = bar[B] + 4, 4, 1
        elif B < 41:
            gp, step, back = bar[B] + 8, 8, 3
        else:
            gp, step, back = bar[B] + 4, 4, 1
        cnt = 0
        if lchk and 9 < B < 41:
            gp = next(x for x in oddend + [10**9] if x > bar[B] + 3)
            if gp > len(T.m):
                gp = bar[B] + 8
        assert gp - 3 > lastvm or B <= 8 or (lchk and max(x for x in allpos if x < gp) > lastvm), (B, gp, lastvm)
        for grp in grps:
            ns = sum(1 for op in grp if op.kind == "s")
            for op in grp:
                if op.kind == "vm":
                    T.fixed[gp].append(op)
                    lastvm = gp
                    gp += step
                    cnt += 1
                    if ones and not lchk and 9 < B < 41 and cnt % 2 == 1:
                        gp += 1
                    if lchk and 9 < B < 41:
                        gp = next((x for x in oddend if x > lastvm), lastvm + 8)
                elif op.kind == "post":
                    op.kind = "s"
                    T.fixed[min(x for x in allpos + [lastvm + 1 + 10**6] if x > lastvm) % 10**6 if lchk and 9 < B < 40 else lastvm + 1].append(op)
                elif lchk and 9 < B < 41:
                    T.fixed[max(x for x in allpos if x < gp)].append(op)
                else:
                    T.fixed[gp - (ns if back == 1 and step > 1 else back)].append(op)
                    ns -= 1
    if cpf:
        T.fixed[18].append(Op("global_load_dword v254, v255, s[60:61]", "vm", tag="cpf"))
    if wpf:
        gp = bar[9] + 40
        nb = 576 * 9216
        pre = []
        for k, (d, b) in enumerate(((24, 96), (28, 98), (36, 100))):
            pre += [f"s_mov_b32 s{d}, s{b}", f"s_mov_b32 s{d+1}, s{b+1}", f"s_mov_b32 s{d+2}, {nb}", f"s_mov_b32 s{d+3}, 0x20000"]
        pre += ["s_lshl_b32 s58, s2, 15", "s_lshl_b32 s59, s46, 13", "s_add_u32 s58, s58, s59",
                "s_lshl_b32 s59, s45, 2", "s_add_u32 s59, s59, s46", "s_mul_i32 s59, s59, 4608"]
        for k, t_ in enumerate(pre):
            T.tail[gp + k].append(Op(t_, "s"))
        T.tail[gp + 18].append(Op(f"v_lshlrev_b32 v254, 3, v{XHV}", "v"))
        T.fixed[gp + 26].append(Op("buffer_load_dword v255, v254, s[20:23], s59 offen", "vm", tag="wpf"))
        if l2pf:
            T.fixed[pstart[39] + 8].append(Op("buffer_load_dword v255, v254, s[20:23], s59 offen", "vm", tag="wpf"))
        if wpf == 1:
            for k, d in enumerate((24, 28, 36)):
                T.fixed[gp + 27 + k].append(Op(f"buffer_load_dword v255, v254, s[{d}:{d+3}], s58 offen", "vm", tag="wpf"))
        elif wpf == 3:
            rot = ["s_mov_b32 s24, s28", "s_mov_b32 s25, s29",
                   "s_mov_b32 s28, s36", "s_mov_b32 s29, s37", "s_mov_b32 s26, s30", "s_mov_b32 s30, s38", "s_mov_b32 s38, 0"]
            for n in range(2, 30, 4):
                g0 = pstart[9 + n] + 76
                T.fixed[g0].append(Op("buffer_load_dword v255, v254, s[24:27], s58 offen", "vm", tag="wpf"))
                for k, t_ in enumerate(rot):
                    T.tail[g0 + 2 + 2 * k].append(Op(t_, "s"))
        else:
            for k, d in enumerate((24, 28)):
                T.fixed[pstart[39 + k] + 76].append(Op(f"buffer_load_dword v255, v254, s[{d}:{d+3}], s58 offen", "vm", tag="wpf"))
        if cpf2:
            lab, nch = cpf2
            T.tail[gp + 19].append(Op("s_getpc_b64 s[60:61]", "s"))
            T.tail[gp + 19].append(Op(f"{name}_pc", "label", cost=0))
            T.tail[gp + 20].append(Op(f"s_add_u32 s60, s60, {lab}-{name}_pc", "s"))
            T.tail[gp + 20].append(Op("s_addc_u32 s61, s61, 0", "s"))
            T.tail[gp + 21].append(Op(f"s_min_u32 s62, s2, {nch-1}", "s"))
            T.tail[gp + 22].append(Op("s_lshl_b32 s62, s62, 13", "s"))
            T.tail[gp + 23].append(Op("v_add_u32 v253, s62, v254", "v"))
            T.fixed[gp + 30].append(Op("global_load_dword v255, v253, s[60:61]", "vm", tag="wpf"))
    T.tail[-1].append(Op("s_nop 1", "s"))
    if debug:
        pts = [-1, 0, pstart[3], pstart[6], n1 - 1, pstart[10], pstart[11] - 1, pstart[39], pstart[41], p3, pstart[46], len(T.m) - 1]
        if p3st:
            pts = [pstart[39], pstart[41]] + [pstart[B] for B in range(42, 51)] + [len(T.m) - 1]
        for k, gp in enumerate(pts):
            T.fixed[gp].append(Op(f"{'s_memrealtime' if debug == 3 else 's_memtime'} s[{66+2*k}:{67+2*k}]", "s"))
    if split:
        kffn16.split_setup(T, pstart[44] + 1, FLAG_OFF + 2048, PART_OFF)
        kffn16.split_signal(T, bar[50], len(T.m) - 6)
    marks, stats = {}, {}
    schedule2(g, T.m, T.fixed, T.flex, T.tail, T.q, lambda i: 24 if i < n1 else budget.get(i, 8), marks=marks, stats=stats, window=20)
    for ln in final_tail:
        if ln.startswith("buffer"):
            g.vm(ln, "stl")
        else:
            g.e(ln)
    if debug and not split:
        stamp_end(g, debug, 0x8000000)
    if split:
        pass
    elif chain:
        g.e("s_waitcnt vmcnt(0)")
        g.e("s_barrier")
    else:
        g.label(f"{name}_end")
        g.e("s_endpgm")
    linear = list(g.seq)
    probs = check_hazards(linear, name)
    blocks = [pstart[9 + n] for n in range(2, 31, 4)]
    segs = [linear[marks[blocks[k]]:marks[blocks[k + 1]]] for k in range(7)]
    ref = [i.text for i in segs[0]]
    for k in range(1, 7):
        cur = [i.text for i in segs[k]]
        if cur != ref:
            j = next(x for x in range(min(len(cur), len(ref))) if cur[x] != ref[x])
            raise AssertionError(f"loop block {k} differs at {j}: {ref[j-3:j+3]} vs {cur[j-3:j+3]}")
    out = linear[:marks[blocks[0]]] + [Ins(f".p2align {align}")] + [Ins("s_nop 0")] * pad + [Ins(f"{name}_loop:")] + segs[0] + linear[marks[blocks[7]]:]
    r = Gen()
    for b in range(2):
        rare_path(r, name, b, sites[b], headhex, ones, lchk)
    probs += check_hazards(r.seq, name + "_rare")
    per = lambda k: 32 if k < n1 else 16
    cum = lambda a, b: sum(max(per(k), 8 + stats[k]) for k in range(a, b))
    info = dict(n_mfma=len(T.m), max_lq=g.max_lq, est_cycles=cum(0, len(T.m)), loop_cyc=cum(blocks[0], blocks[1]), padded=g.padded,
                phases=dict(p1=cum(0, n1), trans1=cum(n1, pstart[11]), tail=cum(pstart[39], p3), p3=cum(p3, len(T.m))))
    info["vq"] = list(g.vq)
    if chain:
        return (g.text(out), r.text()), probs, info
    return g.text(out) + r.text(), probs, info
```

```python
from collections import defaultdict
from asmlib import *
from ksmall import srd, ARG, H2_OFF, PART2_OFF as PART_OFF, ACT_BYTES
import kattn
from kattn import vr, ar, MF

SLOT = 36864
LDS_BYTES = 4 * SLOT
A3, A4, D3, D4, STV, XHV = 8, 12, 20, 23, 26, 27
TMP = 28
XB, YB = 64, 160
HA = 144
RING, NRING = 192, 16


class TL(kattn.Timeline):
    pass


def dma_ops(B):
    slot = B % 4
    tag = f"dma{B}"
    groups = []
    if B < 18:
        gi, kb = B // 6, B % 6
        for q in range(3):
            grp = [Op(f"s_add_u32 m0, s47, {slot*SLOT + q*3072}", "s"),
                   Op(f"s_mov_b32 s50, {(96*kb + 16*q)*9216 + gi*192}", "s")]
            grp += [Op(f"buffer_load_dwordx4 v{D3+j}, s[16:19], s50 offen offset:{j*1024} lds", "vm", tag=tag) for j in range(3)]
            groups.append(grp)
    elif B < 27:
        i = B - 18
        for q in range(3):
            grp = [Op(f"s_add_u32 m0, s47, {slot*SLOT + q*3072}", "s"),
                   Op(f"s_mov_b32 s50, {24*q*1152 + i*128}", "s")]
            grp += [Op(f"buffer_load_dwordx4 v{D4+j}, s[20:23], s50 offen offset:{j*1024} lds", "vm", tag=tag) for j in range(3)]
            groups.append(grp)
    return groups


def xload_ops(s):
    return [Op(f"s_mov_b32 s59, {(s//4)*4096}", "s"),
            Op(f"buffer_load_dwordx4 {ar(4*s, 4)}, v{XHV}, s[24:27], s59 offen offset:{(s%4)*1024}", "vm", tag=f"xr{s}")]


def prologue(g, name, fine=False):
    g.e("s_cmp_ge_u32 s2, 256")
    g.e(f"s_cbranch_scc1 {name}_end")
    g.e(f"s_load_dwordx4 s[4:7], s[0:1], {ARG['w1']}")
    g.e(f"s_load_dwordx2 s[36:37], s[0:1], {ARG['w2']}")
    g.e(f"s_load_dwordx2 s[40:41], s[0:1], {ARG['ws']}")
    g.lines("""
    v_lshrrev_b32 v1, 6, v0
    v_and_b32 v2, 63, v0
    s_and_b32 s44, s2, 7
    s_lshl_b32 s44, s44, 1
    v_readfirstlane_b32 s46, v1
    s_bfe_u32 s45, s2, 0x10003
    s_add_u32 s44, s44, s45
    s_lshr_b32 s45, s2, 4
    """)
    kattn.remap(g, MAPMODE)
    g.lines("""
    s_mul_i32 s47, s46, 9216
    s_and_b32 s57, s46, 1
    s_mul_i32 s57, s57, 442368
    s_mov_b32 s58, 43691
    """)
    for j in range(3):
        g.e(f"v_lshrrev_b32 v3, 2, v2")
        g.e(f"v_add_u32 v3, {16*j}, v3")
        g.e("v_mul_lo_u32 v4, v3, s58")
        g.e("v_lshrrev_b32 v4, 17, v4")
        g.e("v_mul_u32_u24 v5, 3, v4")
        g.e("v_sub_u32 v5, v3, v5")
        g.e("v_and_b32 v6, 3, v2")
        g.e("v_lshlrev_b32 v6, 4, v6")
        g.e("v_lshl_add_u32 v6, v5, 6, v6")
        g.e("v_mul_u32_u24 v4, 9216, v4")
        g.e(f"v_add3_u32 v{D3+j}, v4, v6, s57")
        if j:
            g.e(f"v_subrev_u32 v{D3+j}, {j*1024}, v{D3+j}")
    g.e(f"v_lshlrev_b32 v{XHV}, 4, v2")
    if fine:
        g.e("s_memtime s[70:71]")
    g.e("s_waitcnt lgkmcnt(0)")
    if fine:
        g.e("s_memtime s[72:73]")
    g.e("s_cmp_ge_u32 s46, 2")
    g.e("s_cselect_b32 s4, s6, s4")
    g.e("s_cselect_b32 s5, s7, s5")
    g.e("s_mul_i32 s58, s44, 576")
    srd(g, 16, 4, "s58", 576 * 9216 - 15 * 576)
    g.e("s_lshl_b32 s58, s45, 2")
    g.e("s_add_u32 s58, s58, s46")
    g.e("s_mul_i32 s58, s58, 36864")
    g.e(f"s_add_u32 s58, s58, {H2_OFF}")
    srd(g, 24, 40, "s58", 36864)

    for B in range(2):
        for grp in dma_ops(B):
            for op in grp:
                emit_op(g, op)
        if B == 0:
            for s in range(6):
                for op in xload_ops(s):
                    emit_op(g, op)
    if fine:
        g.e("s_memtime s[74:75]")
    g.e(f"s_mul_i32 s58, s44, {288*1152}")
    srd(g, 20, 36, "s58", 288 * 1152)
    g.e(f"s_mul_i32 s58, s44, {ACT_BYTES}")
    g.e(f"s_mul_i32 s59, s45, {16*9216}")
    g.e("s_add_u32 s58, s58, s59")
    g.e(f"s_add_u32 s58, s58, {PART_OFF}")
    srd(g, 32, 40, "s58", 16 * 9216)
    g.lines(f"""
    s_mov_b32 s55, 0xbfb8aa3b
    v_lshrrev_b32 v1, 5, v2
    v_bfe_u32 v6, v2, 2, 2
    v_and_b32 v7, 3, v2
    v_bfe_u32 v46, v2, 4, 1
    v_lshlrev_b32 v46, 5, v46
    v_lshl_add_u32 v47, v7, 3, v46
    v_lshrrev_b32 v38, 1, v7
    v_and_b32 v39, 1, v7
    v_lshl_add_u32 v38, v39, 1, v38
    v_lshl_add_u32 v46, v38, 3, v46
    v_and_b32 v40, 31, v2
    v_lshl_add_u32 v42, v1, 2, v6
    v_lshl_add_u32 v43, v1, 3, v6
    v_mul_u32_u24 v44, 192, v43
    v_add_u32 v{A3}, v44, v47
    """)
    for sl in range(1, 4):
        g.e(f"v_add_u32 v{A3+sl}, {sl*SLOT}, v{A3}")
    g.e("v_lshrrev_b32 v45, 1, v6")
    for nbl in range(2):
        g.e(f"v_xor_b32 v41, {nbl}, v45")
        g.e("v_lshlrev_b32 v41, 6, v41")
        g.e("v_lshl_add_u32 v44, v42, 7, v41")
        g.e(f"v_add_u32 v{A4+nbl}, v44, v46")
        for sl in range(1, 4):
            g.e(f"v_add_u32 v{A4+2*sl+nbl}, {sl*SLOT}, v{A4+nbl}")
    g.lines(f"""
    v_lshrrev_b32 v41, 3, v2
    s_mul_i32 s58, s46, 72
    v_add_u32 v41, s58, v41
    v_mul_u32_u24 v41, 1152, v41
    v_and_b32 v44, 7, v2
    v_bfe_u32 v45, v2, 4, 1
    v_lshlrev_b32 v45, 2, v45
    v_xor_b32 v45, v45, v44
    v_lshl_add_u32 v{D4}, v45, 4, v41
    """)
    for j in range(1, 3):
        g.e(f"v_add_u32 v{D4+j}, {j*(9216-1024)}, v{D4}")
    g.lines(f"""
    v_lshrrev_b32 v41, 3, v40
    s_lshl_b32 s58, s46, 2
    v_add_u32 v41, s58, v41
    v_mul_u32_u24 v41, 9216, v41
    v_lshl_add_u32 v41, v1, 7, v41
    v_lshl_add_u32 v{STV}, v44, 4, v41
    """)


def gen_k4(name, debug=None, stf="", mapmode=0, nodma=False, pf=False, LA=12, cpf=0):
    global MAPMODE
    MAPMODE = mapmode
    g = Gen()
    if debug:
        g.e("s_memrealtime s[92:93]")
        g.e("s_memrealtime s[64:65]" if debug == 3 else "s_memtime s[64:65]")
    prologue(g, name, debug == 2)
    if debug == 2:
        g.e("s_memtime s[76:77]")
        g.e("s_waitcnt vmcnt(62)")
        g.e("s_memtime s[78:79]")
        g.e("s_waitcnt vmcnt(54)")
        g.e("s_memtime s[80:81]")
        g.e("s_waitcnt vmcnt(53)")
        g.e("s_memtime s[82:83]")
        g.e("s_waitcnt vmcnt(48)")
        g.e("s_memtime s[84:85]")
        g.e("s_waitcnt vmcnt(24)")
        g.e("s_memtime s[86:87]")
        g.e("s_waitcnt vmcnt(0)")
        g.e("s_memtime s[88:89]")
    if pf:
        g.e("s_lshl_b32 s58, s45, 2")
        g.e("s_add_u32 s58, s58, s46")
        g.e("s_and_b32 s59, s58, 31")
        g.e("s_mul_i32 s59, s59, 18")
        g.e("v_mul_u32_u24 v41, 52429, v2")
        g.e("v_lshrrev_b32 v41, 18, v41")
        g.e("v_mul_u32_u24 v44, 5, v41")
        g.e("v_sub_u32 v44, v2, v44")
        g.e("v_add_u32 v41, s59, v41")
        g.e("v_mul_u32_u24 v41, 9216, v41")
        g.e("v_lshl_add_u32 v41, v44, 7, v41")
        g.e("v_add_u32 v45, 110592, v41")
        g.vm("buffer_load_dword v48, v41, s[16:19], 0 offen", "pf")
        g.vm("buffer_load_dword v49, v45, s[16:19], 0 offen", "pf")
        g.e("s_mul_i32 s59, s58, 5184")
        g.e("v_lshlrev_b32 v41, 7, v2")
        g.e("v_add_u32 v41, s59, v41")
        g.vm("buffer_load_dword v50, v41, s[20:23], 0 offen", "pf")
    if cpf:
        kattn.code_prefetch_setup(g, cpf, 49)
    saved = kattn.RING
    kattn.RING = RING
    T = TL()
    pstart = {}
    gend = {}

    def hfrag(fb, a):
        return ar(HA + 8 * fb + 4 * a, 4) if fb < 6 else vr(YB + 8 * (fb - 6) + 4 * a, 4)

    def silu(gi, early, deads):
        buf = XB if gi % 2 == 0 else YB
        for fb in range(3):
            G, U = buf + 16 * fb, buf + 48 + 16 * fb
            for a in range(2):
                dead = deads(fb, a)
                rs = range(8 * a, 8 * a + 8)
                for r in rs:
                    T.v(f"v_mul_f32 v{TMP+r%8}, s55, v{G+r}", early, dead)
                for r in rs:
                    T.v(f"v_exp_f32 v{TMP+r%8}, v{TMP+r%8}", early, dead)
                    T.v(f"v_mul_f32 v{G+r}, v{G+r}, v{U+r}", early, dead)
                for r in rs:
                    T.v(f"v_add_f32 v{TMP+r%8}, 1.0, v{TMP+r%8}", early, dead)
                for r in rs:
                    T.v(f"v_rcp_f32 v{TMP+r%8}, v{TMP+r%8}", early, dead)
                for r in rs:
                    T.v(f"v_mul_f32 v{G+r}, v{G+r}, v{TMP+r%8}", early, dead)
                f9 = 3 * gi + fb
                for k in range(4):
                    if f9 < 6:
                        T.v(f"v_cvt_pk_bf16_f32 v{TMP+8+k}, v{G+8*a+2*k}, v{G+8*a+2*k+1}", early, dead)
                    else:
                        T.v(f"v_cvt_pk_bf16_f32 v{YB+8*(f9-6)+4*a+k}, v{G+8*a+2*k}, v{G+8*a+2*k+1}", early, dead)
                if f9 < 6:
                    for k in range(4):
                        T.v(f"v_accvgpr_write_b32 a{HA+8*f9+4*a+k}, v{TMP+8+k}", early, dead)

    for B in range(18):
        gi, kb = B // 6, B % 6
        pstart[B] = len(T.m)
        buf = XB if gi % 2 == 0 else YB
        pend = []
        for k in range(36):
            ks, mm, fb = k // 6, (k % 6) % 2, (k % 6) // 2
            idx = pstart[B] + k
            off = mm * 18432 + ks * 3072 + fb * 64
            rds = [f"ds_read_b64_tr_b16 {{}}, v{A3+B%4} offset:{off+u*768}" for u in range(2)]
            gp = max(-1, idx - LA)
            pend.append(T.frag(rds, [gp, gp], B, idx, f"w{B}.{k}"))
        for k in range(36):
            ks, mm, fb = k // 6, (k % 6) % 2, (k % 6) // 2
            s = 6 * kb + ks
            acc = buf + 48 * mm + 16 * fb
            need = [t for kk in range(k, k + 4) for t in pend[kk][1]] if k % 4 == 0 else []
            op = Op(f"{MF} {vr(acc, 16)}, {pend[k][0]}, {ar(4*s, 4)}, {'0' if s == 0 else vr(acc, 16)}", "m",
                    lneed=need, vneed=[f"xr{s}"] if gi == 0 else [])
            T.m.append(op)
        if kb == 5:
            gend[gi] = len(T.m) - 1
            if gi < 2:
                silu(gi, gend[gi] + 3, lambda fb, a, e=gend[gi]: e + 200)
    p4 = len(T.m)
    silu(2, gend[2] + 3, lambda fb, a: p4 + 2 * (12 + 2 * fb + a) - 1)

    final_tail = []
    ACC4, PK = YB + 32, XB
    for i in range(9):
        B = 18 + i
        pstart[B] = len(T.m)
        pend = []
        for k in range(36):
            ks, nbl = k // 2, k % 2
            idx = pstart[B] + k
            rds = [f"ds_read_b64_tr_b16 {{}}, v{A4+2*(B%4)+nbl} offset:{ks*2048+u*1024}" for u in range(2)]
            pend.append(T.frag(rds, [idx - LA, idx - LA], B, idx, f"w2{i}.{k}"))
        for k in range(36):
            ks, nbl = k // 2, k % 2
            acc = ACC4 + 32 * (i % 2) + 16 * nbl
            need = [t for kk in range(k, k + 4) for t in pend[kk][1]] if k % 4 == 0 else []
            T.mfma(vr(acc, 16), pend[k][0], hfrag(ks // 2, ks % 2), "0" if ks == 0 else vr(acc, 16), need)
        E = len(T.m) - 1
        pk = PK + 16 * (i % 2)
        cv, st = [], []
        for nbl in range(2):
            acc = ACC4 + 32 * (i % 2) + 16 * nbl
            for r in range(8):
                cv.append(f"v_cvt_pk_bf16_f32 v{pk+8*nbl+r}, v{acc+2*r}, v{acc+2*r+1}")
            for a in range(2):
                st.append(f"buffer_store_dwordx4 {vr(pk+8*nbl+4*a, 4)}, v{STV}, s[32:35], s56 offen offset:{(2*nbl+a)*256}{stf}")
        if i < 8:
            for c in cv:
                T.v(c, E + 4, E + 12)
            T.fixed[E + 11].append(Op(f"s_movk_i32 s56, {i*1024}", "s"))
            for k, s_ in enumerate(st):
                T.fixed[E + 12 + 2 * k].append(Op(s_, "vm", tag="st"))
        else:
            final_tail = ["s_nop 11", f"s_movk_i32 s56, {i*1024}"] + cv[:4] + [st[0]] + cv[4:8] + [st[1]] + cv[8:12] + [st[2]] + cv[12:] + [st[3]]

    bar = {}
    for B in range(27):
        gp = max(-1, T.first_read[B] - 1)
        bar[B] = gp
        op = Op("s_barrier", "s", vneed=[f"dma{B}"], cost=20)
        if B == 0:
            T.fixed[gp].insert(0, op)
        else:
            T.fixed[gp].append(op)
    for B in range(27):
        grps = []
        if B <= 4:
            grps += [xload_ops(s) for s in range(6 * B + 6, 6 * B + 12)]
        if B + 2 <= 26 and not nodma:
            grps += dma_ops(B + 2)
        gp, step = bar[B] + 2, 2
        if B == 0:
            gp = 1
        for grp in grps:
            for op in grp:
                if op.kind == "vm":
                    T.fixed[gp].append(op)
                    gp += step
                else:
                    T.fixed[gp - 1].append(op)
    if cpf:
        T.fixed[20].append(Op(f"global_load_dword v48, v49, s[60:61]", "vm", tag="cpf"))
    if debug:
        pts = [-1, 0, pstart[3], pstart[6], pstart[9], pstart[12], pstart[15], pstart[18], pstart[19], pstart[21], pstart[24], len(T.m) - 1]
        for k, gp in enumerate(pts[:2] if debug == 2 else pts):
            T.fixed[gp].append(Op(f"{'s_memrealtime' if debug == 3 else 's_memtime'} s[{66+2*k}:{67+2*k}]", "s"))
    marks, stats = {}, {}
    schedule(g, T.m, T.fixed, T.tail, T.q, marks=marks, stats=stats)
    for ln in final_tail:
        if ln.startswith("buffer"):
            g.vm(ln)
        else:
            g.e(ln)
    if debug:
        g.e("s_waitcnt vmcnt(0)")
        g.e("s_memrealtime s[90:91]" if debug == 3 else "s_memtime s[90:91]")
        g.e("s_memrealtime s[94:95]")
        g.e("s_waitcnt lgkmcnt(0)")
        srd(g, 8, 40, 0x8100000, 0x100000)
        for k in range(16):
            g.e(f"v_mov_b32 v{48+k}, s{64+2*k}")
        g.e("s_lshl_b32 s58, s2, 2")
        g.e("s_add_u32 s58, s58, s46")
        g.e("s_lshl_b32 s58, s58, 6")
        g.e("v_mov_b32 v1, s58")
        for k in range(4):
            g.vm(f"buffer_store_dwordx4 v[{48+4*k}:{51+4*k}], v1, s[8:11], 0 offen offset:{16*k}")
    g.label(f"{name}_end")
    g.e("s_endpgm")
    kattn.RING = saved
    probs = check_hazards(g.seq, name)
    info = dict(n_mfma=len(T.m), max_lq=g.max_lq, est_cycles=sum(max(32, 8 + v) for k, v in stats.items() if k >= 0),
                n_over=sum(1 for v in stats.values() if v > 24))
    return g.text(), probs, info
```

```python
from collections import defaultdict
from asmlib import *
import asmlib
from ksmall import (srd, ARG, H2_OFF, X1_OFF, MOD2_OFF, FLAG_OFF, PART_OFF, PART2_OFF, ACT_BYTES, NLOG2E, INV_LOG2E_SQ,
                    unpack8, round1, round8, xlane_sum)
import kattn
from kattn import vr, ar

MF = "v_mfma_f32_16x16x32_bf16"
SLOT = 36864
LDS_BYTES = 4 * SLOT + 512
XFLAG = ''
A3, A4, D3, D4, STV, XHV = 8, 16, 32, 35, 38, 39
TMP = 40
XB, YB = 64, 160
HA = 144
RING, NRING = 192, 16
SPREAD = 0


class TL16:
    def __init__(self, ring, nring):
        self.m, self.q = [], []
        self.fixed, self.flex, self.tail = defaultdict(list), defaultdict(list), defaultdict(list)
        self.ring, self.nring = ring, nring
        self.ring_i = 0
        self.ring_last = [-10**9] * nring
        self.first_read = {}

    def frag(self, reads, gp, bundle, last_use, tag, lo=-1):
        e = self.ring_i % self.nring
        self.ring_i += 1
        g0 = max(lo, gp)
        assert self.ring_last[e] <= g0, (self.ring_last[e], gp, tag)
        self.ring_last[e] = last_use
        base = self.ring + 4 * e
        if len(reads) == 1:
            self.fixed[g0].append(Op(reads[0].format(ar(base, 4)), "ds", tag=f"{tag}.0"))
        else:
            self.fixed[g0].append(Op(reads[0].format(ar(base, 2)), "ds", tag=f"{tag}.0"))
            o1 = Op(reads[1].format(ar(base + 2, 2)), "ds", tag=f"{tag}.1")
            if gp + 1 <= lo:
                self.fixed[lo].append(o1)
            else:
                self.flex[gp + 1].append(o1)
        self.first_read[bundle] = min(self.first_read.get(bundle, 10**9), g0)
        return ar(base, 4), [f"{tag}.{k}" for k in range(len(reads))]

    def mfma(self, d, a, b, c, lneed=(), vneed=()):
        self.m.append(Op(f"{MF} {d}, {a}, {b}, {c}", "m", lneed=lneed, vneed=vneed))
        return len(self.m) - 1

    def v(self, text, early, dead, **kw):
        self.q.append(Op(text, "v", early=early, dead=dead, **kw))


def dma_ops(B):
    slot = B % 4
    tag = f"dma{B}"
    groups = []
    for q in range(3):
        if B < 18:
            gi, kb = B // 6, B % 6
            so, vb, sr = (96 * kb + 16 * q) * 9216 + gi * 192, D3, 16
        else:
            so, vb, sr = 24 * q * 1152 + (B - 18) * 128, D4, 20
        grp = [Op(f"s_add_u32 m0, s47, {slot*SLOT + q*3072}", "s"), Op(f"s_mov_b32 s50, {so}", "s")]
        grp += [Op(f"buffer_load_dwordx4 v{vb+j}, s[{sr}:{sr+3}], s50 offen offset:{j*1024} lds", "vm", tag=tag) for j in range(3)]
        groups.append(grp)
    return groups


def hb(b, s):
    return ar(72 * b + 4 * s, 4)


def xload_ops(s, b):
    off = b * 18432 + s * 1024
    return [Op(f"s_mov_b32 s59, {off & ~4095}", "s"),
            Op(f"buffer_load_dwordx4 {hb(b, s)}, v{XHV}, s[24:27], s59 offen offset:{off & 4095}{XFLAG}", "vm", tag=f"xr{s}.{b}")]


def setup_early(g, name, mapmode, fused=False, chain=False):
    if not chain:
        g.e("s_cmp_ge_u32 s2, 256")
        g.e(f"s_cbranch_scc1 {name}_end")
    g.e(f"s_load_dwordx4 s[4:7], s[0:1], {ARG['w1']}")
    g.e(f"s_load_dwordx2 s[36:37], s[0:1], {ARG['w2']}")
    g.e(f"s_load_dwordx2 s[40:41], s[0:1], {ARG['ws']}")
    if fused:
        g.e(f"s_load_dwordx2 s[8:9], s[0:1], {ARG['x']}")
        g.e("s_getpc_b64 s[60:61]")
        g.e("v_lshlrev_b32 v62, 6, v0")
        g.e("global_load_dword v63, v62, s[60:61]")
    g.lines("""
    v_lshrrev_b32 v1, 6, v0
    v_and_b32 v2, 63, v0
    s_and_b32 s44, s2, 7
    s_lshl_b32 s44, s44, 1
    v_readfirstlane_b32 s46, v1
    s_bfe_u32 s45, s2, 0x10003
    s_add_u32 s44, s44, s45
    s_lshr_b32 s45, s2, 4
    """)
    kattn.remap(g, mapmode)
    g.lines("""
    s_mul_i32 s47, s46, 9216
    s_and_b32 s57, s46, 1
    s_mul_i32 s57, s57, 442368
    s_mov_b32 s58, 43691
    v_and_b32 v7, 3, v2
    """)
    for j in range(3):
        g.e("v_lshrrev_b32 v3, 2, v2")
        g.e(f"v_add_u32 v3, {16*j}, v3")
        g.e("v_mul_lo_u32 v4, v3, s58")
        g.e("v_lshrrev_b32 v4, 17, v4")
        g.e("v_mul_u32_u24 v5, 3, v4")
        g.e("v_sub_u32 v5, v3, v5")
        g.e("v_bfe_u32 v6, v4, 2, 1")
        g.e("v_lshlrev_b32 v6, 1, v6")
        g.e("v_xor_b32 v6, v6, v7")
        g.e("v_lshlrev_b32 v6, 4, v6")
        g.e("v_lshl_add_u32 v6, v5, 6, v6")
        g.e("v_mul_u32_u24 v4, 9216, v4")
        g.e(f"v_add3_u32 v{D3+j}, v4, v6, s57")
        if j:
            g.e(f"v_subrev_u32 v{D3+j}, {j*1024}, v{D3+j}")
    g.e(f"v_lshlrev_b32 v{XHV}, 4, v2")
    g.e("s_waitcnt lgkmcnt(0)")
    g.e("s_cmp_ge_u32 s46, 2")
    g.e("s_cselect_b32 s4, s6, s4")
    g.e("s_cselect_b32 s5, s7, s5")
    g.e("s_mul_i32 s58, s44, 576")
    srd(g, 16, 4, "s58", 576 * 9216 - 15 * 576)
    g.e("s_lshl_b32 s58, s45, 2")
    g.e("s_add_u32 s58, s58, s46")
    g.e("s_mul_i32 s58, s58, 36864")
    g.e(f"s_add_u32 s58, s58, {H2_OFF}")
    srd(g, 24, 40, "s58", 36864)


def setup_late(g):
    g.e("v_and_b32 v7, 3, v2")
    g.e(f"s_mul_i32 s58, s44, {288*1152}")
    srd(g, 20, 36, "s58", 288 * 1152)
    g.e(f"s_mul_i32 s58, s44, {ACT_BYTES}")
    g.e(f"s_mul_i32 s59, s45, {16*9216}")
    g.e("s_add_u32 s58, s58, s59")
    g.e(f"s_add_u32 s58, s58, {PART2_OFF}")
    srd(g, 32, 40, "s58", 16 * 9216)
    g.lines(f"""
    v_lshrrev_b32 v1, 4, v2
    v_bfe_u32 v6, v2, 2, 4
    v_lshlrev_b32 v7, 3, v7
    v_mul_u32_u24 v44, 192, v6
    v_add_u32 v44, v44, v7
    v_and_b32 v45, 1, v1
    v_lshl_add_u32 v{A3}, v45, 5, v44
    v_xor_b32 v45, 1, v45
    v_lshl_add_u32 v{A3+1}, v45, 5, v44
    """)
    for sl in range(1, 4):
        for par in range(2):
            g.e(f"v_add_u32 v{A3+2*sl+par}, {sl*SLOT}, v{A3+par}")
    g.e("v_lshl_add_u32 v44, v6, 7, v7")
    g.e("v_bfe_u32 v45, v6, 1, 2")
    for nb in range(4):
        g.e(f"v_xor_b32 v46, {nb}, v45")
        g.e(f"v_lshl_add_u32 v{A4+nb}, v46, 5, v44")
        for sl in range(1, 4):
            g.e(f"v_add_u32 v{A4+4*sl+nb}, {sl*SLOT}, v{A4+nb}")
    g.lines(f"""
    v_lshrrev_b32 v41, 3, v2
    s_mul_i32 s58, s46, 72
    v_add_u32 v41, s58, v41
    v_mul_u32_u24 v41, 1152, v41
    v_and_b32 v44, 7, v2
    v_lshlrev_b32 v45, 1, v1
    v_xor_b32 v45, v45, v44
    v_lshl_add_u32 v{D4}, v45, 4, v41
    """)
    for j in range(1, 3):
        g.e(f"v_add_u32 v{D4+j}, {j*(9216-1024)}, v{D4}")
    g.lines(f"""
    v_bfe_u32 v41, v2, 3, 1
    s_lshl_b32 s58, s46, 2
    v_add_u32 v41, s58, v41
    v_mul_u32_u24 v41, 9216, v41
    v_lshl_add_u32 v41, v1, 7, v41
    v_lshl_add_u32 v{STV}, v44, 4, v41
    """)


def prologue(g, name, mapmode):
    setup_early(g, name, mapmode)
    for B in range(2):
        for grp in dma_ops(B):
            for op in grp:
                emit_op(g, op)
        if B == 0:
            for s in range(3):
                for b in range(2):
                    for op in xload_ops(s, b):
                        emit_op(g, op)
    setup_late(g)


def emit_groups(g, grps):
    for grp in grps:
        for op in grp:
            emit_op(g, op)


def prologue_fused(g, name, mapmode, fine=False, exact=True, chain=False):
    Q0, A, U, X, GA = 64, 40, 8, 244, 220
    cnt = [0]

    def st():
        if fine:
            g.e(f"s_memrealtime s[{70+2*cnt[0]}:{71+2*cnt[0]}]")
            cnt[0] += 1

    pf_ = " sc1" if chain else ""
    if chain:
        g.lines(f"""
        s_lshl_b32 s58, s45, 7
        s_add_u32 s58, s58, {FLAG_OFF + 2048}
        """)
        srd(g, 28, 40, "s58", 64)
        g.lines(f"""
        s_lshl_b32 s58, s44, 2
        v_mov_b32 v49, s58
        v_mov_b32 v50, 1
        s_cmp_lg_u32 s46, 3
        s_cbranch_scc1 {name}_nf1
        s_mov_b64 exec, 1
        buffer_store_dword v50, v49, s[28:31], 0 offen sc1
        s_mov_b64 exec, -1
        """)
        g.label(f"{name}_nf1")
    setup_early(g, name, mapmode, True, chain)
    st()
    g.lines(f"""
    s_mov_b32 s53, 0xffff0000
    s_lshl_b32 s56, s45, 4
    s_add_u32 s56, s56, s44
    s_mul_i32 s57, s56, 9216
    s_lshl_b32 s58, s45, 7
    s_add_u32 s58, s58, {FLAG_OFF}
    """)
    srd(g, 60, 40, "s58", 64)
    g.e("s_cmp_eq_u32 s46, 3")
    g.e(f"s_cbranch_scc1 {name}_w3")
    srd(g, 12, 40, PART_OFF, 16 * ACT_BYTES)
    g.e("v_lshlrev_b32 v16, 4, v0")
    g.e("v_add_u32 v16, s57, v16")
    g.e("v_add_u32 v17, 6144, v16")
    if chain:
        emit_groups(g, dma_ops(0) + dma_ops(1) + dma_ops(2) + dma_ops(3))
        g.e("s_barrier")
    free = [Q0 + 4 * k for k in range(39)]
    where = {}

    def pload(p):
        g.e(f"s_mov_b32 s59, {p*ACT_BYTES}")
        for i in range(3):
            r = free.pop(0)
            where[(p, i)] = r
            g.vm(f"buffer_load_dwordx4 {vr(r, 4)}, v{17 if i == 2 else 16}, s[12:15], s59 offen offset:{3072 if i == 1 else 0}{pf_}", f"p{p}")

    for p in range(13):
        pload(p)
    g.lines(f"""
    v_and_b32 v18, 7, v0
    v_bfe_u32 v19, v0, 3, 2
    v_lshrrev_b32 v20, 5, v0
    v_lshlrev_b32 v21, 6, v20
    v_lshl_add_u32 v21, v19, 3, v21
    v_mul_u32_u24 v22, 1152, v18
    v_add3_u32 v22, v22, v21, s57
    v_lshlrev_b32 v23, 1, v21
    s_mov_b32 s10, {ACT_BYTES}
    s_mov_b32 s11, 0x20000
    """)
    srd(g, 28, 40, MOD2_OFF, 9216)
    for i in range(3):
        g.vm(f"buffer_load_dwordx2 {vr(X+4*i, 2)}, v22, s[8:11], 0 offen offset:{i*384}", "x")
        g.vm(f"buffer_load_dwordx2 {vr(X+4*i+2, 2)}, v22, s[8:11], 0 offen offset:{i*384+32}", "x")

    def tload(regs, off, tag):
        g.e(f"s_movk_i32 s59, {off}")
        for i in range(3):
            for h in range(2):
                g.vm(f"buffer_load_dwordx4 {vr(regs[2*i+h], 4)}, v23, s[28:31], s59 offen offset:{i*768+h*64}", tag)

    ga = [GA + 4 * k for k in range(6)]
    tload(ga, 0, "x")
    st()
    g2 = sb = None
    for p in range(16):
        g.wait(vtags=[f"p{p}"])
        for i in range(3):
            r = where[(p, i)]
            if p == 0:
                unpack8(g, r, A + 8 * i, "s53")
            else:
                unpack8(g, r, U, "s53")
                for k in range(4):
                    g.e(f"v_pk_add_f32 {vr(A+8*i+2*k, 2)}, {vr(A+8*i+2*k, 2)}, {vr(U+2*k, 2)}")
            free.append(r)
        if p < 3:
            pload(13 + p)
        if p == 4:
            g2 = [free.pop(0) for _ in range(6)]
            tload(g2, 2304, "y")
        if p == 6:
            sb = [free.pop(0) for _ in range(6)]
            tload(sb, 4608, "y")
        if p in (3, 7, 9, 11) and not chain:
            emit_groups(g, dma_ops((3, 7, 9, 11).index(p)))
    st()
    T = free[:8]
    if exact:
        for i in range(3):
            round8(g, A + 8 * i, U, "s53")
        for i in range(3):
            for k in range(8):
                g.e(f"v_mul_f32 v{A+8*i+k}, v{A+8*i+k}, v{ga[2*i+k//4]+k%4}")
        for i in range(3):
            round8(g, A + 8 * i, U, "s53")
            unpack8(g, X + 4 * i, U, "s53")
            for k in range(8):
                g.e(f"v_add_f32 v{A+8*i+k}, v{A+8*i+k}, v{U+k}")
            round8(g, A + 8 * i, X + 4 * i, "s53")
        g.e(f"v_add_f32 v24, v{A}, v{A+1}")
        g.e(f"v_mul_f32 v25, v{A}, v{A}")
        g.e(f"v_fmac_f32 v25, v{A+1}, v{A+1}")
        for k in range(2, 24):
            g.e(f"v_add_f32 v24, v24, v{A+k}")
            g.e(f"v_fmac_f32 v25, v{A+k}, v{A+k}")
    else:
        for i in range(3):
            round8(g, A + 8 * i, U, "s53")
            unpack8(g, X + 4 * i, U, "s53")
            for k in range(0, 8, 2):
                g.e(f"v_pk_fma_f32 {vr(A+8*i+k, 2)}, {vr(A+8*i+k, 2)}, {vr(ga[2*i+k//4]+k%4, 2)}, {vr(U+k, 2)}")
            round8(g, A + 8 * i, X + 4 * i, "s53")
        g.e(f"s_mov_b32 s54, {NLOG2E:#x}")
        g.e(f"s_mov_b32 s55, {NLOG2E:#x}")
        g.e("s_mov_b32 s58, 0x3f803f80")
        for k in range(4):
            g.e(f"v_mov_b32 v{24+k}, 0")
        for k in range(12):
            g.e(f"v_dot2_f32_bf16 v{24+2*(k%2)}, v{X+k}, s58, v{24+2*(k%2)}")
            g.e(f"v_dot2_f32_bf16 v{25+2*(k%2)}, v{X+k}, v{X+k}, v{25+2*(k%2)}")
        g.e("s_nop 2")
        g.e("v_add_f32 v24, v24, v26")
        g.e("v_add_f32 v25, v25, v27")
    xlane_sum(g, [24, 25], [26, 27])
    g.lines(f"""
    v_lshlrev_b32 v28, 5, v18
    v_add_u32 v28, {4*SLOT}, v28
    v_lshl_add_u32 v29, v1, 3, v28
    ds_write_b64 v29, v[24:25]
    """)
    srd(g, 12, 40, X1_OFF, ACT_BYTES)
    for i in range(3):
        g.vm(f"buffer_store_dwordx2 {vr(X+4*i, 2)}, v22, s[12:15], 0 offen offset:{i*384}")
        g.vm(f"buffer_store_dwordx2 {vr(X+4*i+2, 2)}, v22, s[12:15], 0 offen offset:{i*384+32}")
    g.lines(f"""
    v_lshlrev_b32 v30, 10, v20
    v_lshl_add_u32 v30, v19, 8, v30
    v_lshl_add_u32 v30, v18, 4, v30
    s_lshr_b32 s58, s56, 1
    s_mul_i32 s58, s58, 18432
    s_and_b32 s59, s56, 1
    s_lshl_b32 s59, s59, 7
    s_add_u32 s58, s58, s59
    v_add_u32 v30, s58, v30
    s_waitcnt lgkmcnt(0)
    s_barrier
    ds_read_b128 v[24:27], v28
    ds_read_b64 v[8:9], v28 offset:16
    """)
    srd(g, 12, 40, H2_OFF, ACT_BYTES)
    g.lines("""
    s_waitcnt lgkmcnt(0)
    v_add_f32 v24, v24, v26
    v_add_f32 v25, v25, v27
    v_add_f32 v24, v24, v8
    v_add_f32 v25, v25, v9
    v_mul_f32 v24, 0x3ae38e39, v24
    v_mul_f32 v25, 0x3ae38e39, v25
    v_fma_f32 v25, -v24, v24, v25
    v_max_f32 v25, 0, v25
    """)
    round1(g, 24)
    round1(g, 25)
    g.e("v_add_f32 v25, 0x3727c5ac, v25")
    round1(g, 25)
    if exact:
        g.e("v_sqrt_f32 v25, v25")
        for k in range(24):
            g.e(f"v_sub_f32 v{A+k}, v{A+k}, v24")
        round1(g, 25)
        g.e("v_rcp_f32 v26, v25")
        g.wait(vtags=["y"])
        for i in range(3):
            a_ = A + 8 * i
            round8(g, a_, T[0], "s53")
            for k in range(8):
                g.e(f"v_mul_f32 v{U+k}, v{a_+k}, v26")
            for k in range(8):
                g.e(f"v_fma_f32 v{a_+k}, -v{U+k}, v25, v{a_+k}")
            for k in range(8):
                g.e(f"v_fmac_f32 v{U+k}, v{a_+k}, v26")
            round8(g, U, T[0], "s53")
            for k in range(8):
                g.e(f"v_mul_f32 v{U+k}, v{U+k}, v{g2[2*i+k//4]+k%4}")
            round8(g, U, T[0], "s53")
            for k in range(8):
                g.e(f"v_add_f32 v{U+k}, v{U+k}, v{sb[2*i+k//4]+k%4}")
            for k in range(8):
                g.e(f"v_mul_f32 v{U+k}, {NLOG2E:#x}, v{U+k}")
            for k in range(4):
                g.e(f"v_cvt_pk_bf16_f32 v{T[1+i]+k}, v{U+2*k}, v{U+2*k+1}")
            g.e(f"s_movk_i32 s59, {i*6144}")
            g.vm(f"buffer_store_dwordx4 {vr(T[1+i], 4)}, v30, s[12:15], s59 offen sc1")
    else:
        g.e("v_sqrt_f32 v25, v25")
        g.wait(vtags=["y"])
        for r in g2 + sb:
            for k in range(0, 4, 2):
                g.e(f"v_pk_mul_f32 {vr(r+k, 2)}, {vr(r+k, 2)}, s[54:55]")
        round1(g, 25)
        g.e("v_rcp_f32 v26, v25")
        g.e("s_nop 0")
        g.e("v_mul_f32 v24, v24, v26")
        g.e("v_sub_f32 v24, 0, v24")
        for i in range(3):
            a_ = A + 8 * i
            for k in range(0, 8, 2):
                g.e(f"v_pk_fma_f32 {vr(a_+k, 2)}, {vr(a_+k, 2)}, v[26:27], v[24:25] op_sel_hi:[1,0,0]")
            for k in range(0, 8, 2):
                g.e(f"v_pk_fma_f32 {vr(a_+k, 2)}, {vr(a_+k, 2)}, {vr(g2[2*i+k//4]+k%4, 2)}, {vr(sb[2*i+k//4]+k%4, 2)}")
            for k in range(4):
                g.e(f"v_cvt_pk_bf16_f32 v{T[1+i]+k}, v{a_+2*k}, v{a_+2*k+1}")
            g.e(f"s_movk_i32 s59, {i*6144}")
            g.vm(f"buffer_store_dwordx4 {vr(T[1+i], 4)}, v30, s[12:15], s59 offen sc1")
    st()
    setup_late(g)
    g.wait(vall=True)
    g.e("s_barrier")
    g.e(f"s_branch {name}_go")

    g.label(f"{name}_w3")
    if chain:
        g.e("v_and_b32 v48, 15, v2")
        g.e("v_lshlrev_b32 v48, 2, v48")
        g.e("s_mov_b32 s56, 0x80000")
        g.label(f"{name}_poll1")
        g.e("buffer_load_dword v51, v48, s[28:31], 0 offen sc1")
        g.e("s_waitcnt vmcnt(0)")
        g.e("v_cmp_ne_u32 vcc, 1, v51")
        g.e("s_sub_u32 s56, s56, 1")
        g.e(f"s_cbranch_scc1 {name}_got1")
        g.e(f"s_cbranch_vccz {name}_got1")
        g.e("s_sleep 2")
        g.e(f"s_branch {name}_poll1")
        g.label(f"{name}_got1")
        g.e("s_barrier")
    emit_groups(g, dma_ops(0) + dma_ops(1) + dma_ops(2) + dma_ops(3))
    setup_late(g)
    g.lines(f"""
    v_and_b32 v48, 15, v2
    v_lshlrev_b32 v48, 2, v48
    s_lshl_b32 s58, s44, 2
    v_mov_b32 v49, s58
    v_mov_b32 v50, 1
    s_mov_b32 s56, 0x80000
    s_waitcnt vmcnt(0)
    s_barrier
    s_barrier
    s_mov_b64 exec, 1
    buffer_store_dword v50, v49, s[60:63], 0 offen sc1
    s_mov_b64 exec, -1
    """)
    g.label(f"{name}_poll")
    g.e("buffer_load_dword v51, v48, s[60:63], 0 offen sc1")
    g.e("s_waitcnt vmcnt(0)")
    g.e("v_cmp_ne_u32 vcc, 1, v51")
    g.e("s_sub_u32 s56, s56, 1")
    g.e(f"s_cbranch_scc1 {name}_go")
    g.e(f"s_cbranch_vccz {name}_go")
    g.e("s_sleep 2")
    g.e(f"s_branch {name}_poll")
    g.label(f"{name}_go")
    g.vq = []
    st()
    g.e("s_barrier")
    st()
    for s in range(4):
        for b in range(2):
            emit_groups(g, [xload_ops(s, b)])


FA, FD, FI, FP, PA, PB_ = 8, 9, 10, 11, 12, 13


def split_setup(T, gp, flag_base, part_off):
    ops = ["s_lshl_b32 s58, s45, 7", f"s_add_u32 s58, s58, {flag_base}", "s_add_u32 s28, s40, s58", "s_addc_u32 s29, s41, 0",
           "s_movk_i32 s30, 128", "s_mov_b32 s31, 0x20000",
           f"s_add_u32 s12, s40, {part_off}", "s_addc_u32 s13, s41, 0", f"s_mov_b32 s14, {16*ACT_BYTES}", "s_mov_b32 s15, 0x20000",
           "s_lshl_b32 s58, s44, 2", f"v_mov_b32 v{FA}, s58", f"v_mov_b32 v{FD}, 1", f"v_and_b32 v{FI}, 15, v0", f"v_lshlrev_b32 v{FI}, 2, v{FI}",
           "s_lshl_b32 s52, s45, 4", "s_add_u32 s52, s52, s44", "s_mul_i32 s52, s52, 9216",
           f"v_lshlrev_b32 v{PA}, 4, v0", f"v_add_u32 v{PA}, s52, v{PA}", f"v_add_u32 v{PB_}, 6144, v{PA}", "s_mov_b32 s53, 0xffff0000"]
    k = 0
    for o in ops:
        T.tail[gp + k].append(Op(o, "v" if o.startswith("v_") else "s"))
        if not o.startswith("s_add_u32 s28") and not o.startswith("s_add_u32 s12"):
            k += 1


def split_signal(T, bar_gap, poll_gap):
    T.fixed[bar_gap + 2].append(Op("s_mov_b64 exec, 1", "s"))
    T.fixed[bar_gap + 2].append(Op(f"buffer_store_dword v{FD}, v{FA}, s[28:31], 0 offen sc1", "vm", tag="fa"))
    T.fixed[bar_gap + 2].append(Op("s_mov_b64 exec, -1", "s"))
    T.fixed[poll_gap].append(Op(f"buffer_load_dword v{FP}, v{FI}, s[28:31], 0 offen sc1", "vm", tag="poll"))


def poll_loop(g, lab, done, off, first_loaded=False):
    g.e("s_mov_b32 s59, 0x80000")
    if first_loaded:
        g.wait(vtags=["poll"])
        g.e(f"v_cmp_ne_u32 vcc, 1, v{FP}")
        g.e("s_nop 0")
        g.e(f"s_cbranch_vccz {done}")
    g.label(lab)
    g.e(f"buffer_load_dword v{FP}, v{FI}, s[28:31], 0 offen offset:{off} sc1")
    g.e("s_waitcnt vmcnt(0)")
    g.e(f"v_cmp_ne_u32 vcc, 1, v{FP}")
    g.e("s_sub_u32 s59, s59, 1")
    g.e(f"s_cbranch_scc1 {done}")
    g.e(f"s_cbranch_vccz {done}")
    g.e("s_sleep 2")
    g.e(f"s_branch {lab}")
    g.label(done)


class SplitReduce:
    A, U = 40, 16

    def __init__(self, g):
        self.g = g
        self.free = [64 + 4 * k for k in range(48)]
        self.where = {}

    def load(self, p, i):
        g = self.g
        r = self.free.pop(0)
        self.where[(p, i)] = r
        g.e(f"s_mov_b32 s59, {p*ACT_BYTES}")
        g.vm(f"buffer_load_dwordx4 {vr(r, 4)}, v{PB_ if i == 2 else PA}, s[12:15], s59 offen offset:{3072 if i == 1 else 0} sc1", f"p{p}.{i}")

    def use(self, p, i):
        g, A, U = self.g, self.A, self.U
        g.wait(vtags=[f"p{p}.{i}"])
        r = self.where[(p, i)]
        if p == 0:
            unpack8(g, r, A + 8 * i, "s53")
        else:
            unpack8(g, r, U, "s53")
            for k in range(4):
                g.e(f"v_pk_add_f32 {vr(A+8*i+2*k, 2)}, {vr(A+8*i+2*k, 2)}, {vr(U+2*k, 2)}")
        self.free.append(r)

    def take(self, n):
        return [self.free.pop(0) for _ in range(n)]


def row_addrs(g):
    g.lines("""
    v_and_b32 v24, 7, v0
    v_bfe_u32 v25, v0, 3, 2
    v_lshrrev_b32 v26, 5, v0
    v_lshlrev_b32 v27, 6, v26
    v_lshl_add_u32 v27, v25, 3, v27
    v_mul_u32_u24 v28, 1152, v24
    v_add3_u32 v28, v28, v27, s52
    v_lshlrev_b32 v29, 1, v27
    """)


def row_loads(g, X, sr, tag):
    for i in range(3):
        g.vm(f"buffer_load_dwordx2 {vr(X[i], 2)}, v28, s[{sr}:{sr+3}], 0 offen offset:{i*384}", tag)
        g.vm(f"buffer_load_dwordx2 {vr(X[i]+2, 2)}, v28, s[{sr}:{sr+3}], 0 offen offset:{i*384+32}", tag)


def row_stores(g, X, sr, i):
    g.vm(f"buffer_store_dwordx2 {vr(X[i], 2)}, v28, s[{sr}:{sr+3}], 0 offen offset:{i*384}")
    g.vm(f"buffer_store_dwordx2 {vr(X[i]+2, 2)}, v28, s[{sr}:{sr+3}], 0 offen offset:{i*384+32}")


def tab_loads(g, regs, sr, off, tag):
    g.e(f"s_movk_i32 s59, {off}")
    for i in range(3):
        for h in range(2):
            g.vm(f"buffer_load_dwordx4 {vr(regs[2*i+h], 4)}, v29, s[{sr}:{sr+3}], s59 offen offset:{i*768+h*64}", tag)


def final_flag_wave(g, name, tagn):
    g.e("s_waitcnt vmcnt(0)")
    g.e("s_barrier")
    g.e("s_mov_b64 exec, 1")
    g.e(f"buffer_store_dword v{FD}, v{FA}, s[28:31], 0 offen offset:64 sc1")
    g.e("s_mov_b64 exec, -1")
    poll_loop(g, f"{name}_pb{tagn}", f"{name}_gb{tagn}", 64)
    g.e("s_barrier")


def mid_split(g, name, mapmode, fine=False):
    cnt = [0]

    def st():
        if fine:
            g.e(f"s_memrealtime s[{70+2*cnt[0]}:{71+2*cnt[0]}]")
            cnt[0] += 1

    g.e("s_cmp_eq_u32 s46, 3")
    g.e(f"s_cbranch_scc1 {name}_w3")
    poll_loop(g, f"{name}_pa1", f"{name}_ga1", 0, True)
    st()
    R = SplitReduce(g)
    A, U = R.A, R.U
    for p in range(16):
        for i in range(2):
            R.load(p, i)
    st()
    g.wait(vtags=["stl"])
    g.e("s_barrier")
    st()
    setup_early(g, name, mapmode, True, True)
    emit_groups(g, dma_ops(0) + dma_ops(1))
    row_addrs(g)
    g.e(f"s_mov_b32 s10, {ACT_BYTES}")
    g.e("s_mov_b32 s11, 0x20000")
    srd(g, 20, 40, MOD2_OFF, 9216)
    for p in range(6):
        for i in range(2):
            R.use(p, i)
    st()
    g.e("s_barrier")
    st()
    for p in range(16):
        R.load(p, 2)
    X, ga = R.take(3), R.take(6)
    row_loads(g, X, 8, "x")
    tab_loads(g, ga, 20, 0, "x")
    g2 = sb = None
    for p in range(6, 16):
        for i in range(2):
            R.use(p, i)
        if p == 8:
            g2 = R.take(6)
            tab_loads(g, g2, 20, 2304, "y")
        if p == 11:
            sb = R.take(6)
            tab_loads(g, sb, 20, 4608, "y")
        if p in (9, 13):
            emit_groups(g, dma_ops(2 if p == 9 else 3))
    st()
    for p in range(16):
        R.use(p, 2)
    st()
    g.wait(vtags=["x"])
    for i in range(3):
        round8(g, A + 8 * i, U, "s53")
        unpack8(g, X[i], U, "s53")
        for k in range(0, 8, 2):
            g.e(f"v_pk_fma_f32 {vr(A+8*i+k, 2)}, {vr(A+8*i+k, 2)}, {vr(ga[2*i+k//4]+k%4, 2)}, {vr(U+k, 2)}")
        round8(g, A + 8 * i, X[i], "s53")
    g.e(f"s_mov_b32 s54, {NLOG2E:#x}")
    g.e(f"s_mov_b32 s55, {NLOG2E:#x}")
    g.e("s_mov_b32 s58, 0x3f803f80")
    for k in range(4):
        g.e(f"v_mov_b32 v{U+k}, 0")
    for k in range(12):
        x_ = X[k // 4] + k % 4
        g.e(f"v_dot2_f32_bf16 v{U+2*(k%2)}, v{x_}, s58, v{U+2*(k%2)}")
        g.e(f"v_dot2_f32_bf16 v{U+1+2*(k%2)}, v{x_}, v{x_}, v{U+1+2*(k%2)}")
    g.e("s_nop 2")
    g.e(f"v_add_f32 v{U}, v{U}, v{U+2}")
    g.e(f"v_add_f32 v{U+1}, v{U+1}, v{U+3}")
    xlane_sum(g, [U, U + 1], [U + 2, U + 3])
    g.lines(f"""
    v_lshlrev_b32 v30, 5, v24
    v_add_u32 v30, {4*SLOT}, v30
    v_lshl_add_u32 v31, v1, 3, v30
    ds_write_b64 v31, {vr(U, 2)}
    """)
    srd(g, 12, 40, X1_OFF, ACT_BYTES)
    for i in range(3):
        row_stores(g, X, 12, i)
    g.lines(f"""
    v_lshlrev_b32 v31, 10, v26
    v_lshl_add_u32 v31, v25, 8, v31
    v_lshl_add_u32 v31, v24, 4, v31
    s_lshl_b32 s56, s45, 3
    s_lshr_b32 s58, s44, 1
    s_add_u32 s58, s58, s56
    s_mul_i32 s58, s58, 18432
    s_and_b32 s59, s44, 1
    s_lshl_b32 s59, s59, 7
    s_add_u32 s58, s58, s59
    v_add_u32 v31, s58, v31
    s_waitcnt lgkmcnt(0)
    s_barrier
    ds_read_b128 {vr(U, 4)}, v30
    ds_read_b64 {vr(U+4, 2)}, v30 offset:16
    """)
    srd(g, 12, 40, H2_OFF, ACT_BYTES)
    g.wait(vtags=["y"])
    for r in g2 + sb:
        for k in range(0, 4, 2):
            g.e(f"v_pk_mul_f32 {vr(r+k, 2)}, {vr(r+k, 2)}, s[54:55]")
    g.lines(f"""
    s_waitcnt lgkmcnt(0)
    v_add_f32 v{U}, v{U}, v{U+2}
    v_add_f32 v{U+1}, v{U+1}, v{U+3}
    v_add_f32 v{U}, v{U}, v{U+4}
    v_add_f32 v{U+1}, v{U+1}, v{U+5}
    v_mul_f32 v{U}, 0x3ae38e39, v{U}
    v_mul_f32 v{U+1}, 0x3ae38e39, v{U+1}
    v_fma_f32 v{U+1}, -v{U}, v{U}, v{U+1}
    v_max_f32 v{U+1}, 0, v{U+1}
    """)
    round1(g, U)
    round1(g, U + 1)
    g.e(f"v_add_f32 v{U+1}, 0x3727c5ac, v{U+1}")
    round1(g, U + 1)
    g.e(f"v_sqrt_f32 v{U+1}, v{U+1}")
    round1(g, U + 1)
    g.e(f"v_rcp_f32 v{U+2}, v{U+1}")
    g.e(f"v_mul_f32 v{U}, v{U}, v{U+2}")
    g.e(f"v_sub_f32 v{U}, 0, v{U}")
    T3 = R.take(3)
    for i in range(3):
        a_ = A + 8 * i
        for k in range(0, 8, 2):
            g.e(f"v_pk_fma_f32 {vr(a_+k, 2)}, {vr(a_+k, 2)}, {vr(U+2, 2)}, {vr(U, 2)} op_sel_hi:[1,0,0]")
        for k in range(0, 8, 2):
            g.e(f"v_pk_fma_f32 {vr(a_+k, 2)}, {vr(a_+k, 2)}, {vr(g2[2*i+k//4]+k%4, 2)}, {vr(sb[2*i+k//4]+k%4, 2)}")
        for k in range(4):
            g.e(f"v_cvt_pk_bf16_f32 v{T3[i]+k}, v{a_+2*k}, v{a_+2*k+1}")
        g.e(f"s_movk_i32 s59, {i*6144}")
        g.vm(f"buffer_store_dwordx4 {vr(T3[i], 4)}, v31, s[12:15], s59 offen sc1")
    st()
    setup_late(g)
    g.wait(vall=True)
    st()
    g.e("s_barrier")
    g.e(f"s_branch {name}_go")

    g.label(f"{name}_w3")
    g.vq = []
    final_flag_wave(g, name, 1)
    setup_early(g, name, mapmode, True, True)
    emit_groups(g, dma_ops(0) + dma_ops(1) + dma_ops(2) + dma_ops(3))
    g.e("s_lshl_b32 s58, s45, 7")
    g.e(f"s_add_u32 s58, s58, {FLAG_OFF}")
    srd(g, 28, 40, "s58", 64)
    g.e(f"v_mov_b32 v48, v{FA}")
    g.e(f"v_mov_b32 v49, v{FD}")
    g.e(f"v_mov_b32 v50, v{FI}")
    setup_late(g)
    g.lines(f"""
    s_mov_b32 s56, 0x80000
    s_waitcnt vmcnt(0)
    s_barrier
    s_barrier
    s_mov_b64 exec, 1
    buffer_store_dword v49, v48, s[28:31], 0 offen sc1
    s_mov_b64 exec, -1
    """)
    g.label(f"{name}_poll")
    g.e("buffer_load_dword v51, v50, s[28:31], 0 offen sc1")
    g.e("s_waitcnt vmcnt(0)")
    g.e("v_cmp_ne_u32 vcc, 1, v51")
    g.e("s_sub_u32 s56, s56, 1")
    g.e(f"s_cbranch_scc1 {name}_go")
    g.e(f"s_cbranch_vccz {name}_go")
    g.e("s_sleep 2")
    g.e(f"s_branch {name}_poll")
    g.label(f"{name}_go")
    g.vq = []
    g.e("s_barrier")
    for s in range(4):
        for b in range(2):
            emit_groups(g, [xload_ops(s, b)])


def final_split(g, name):
    g.e("s_cmp_lg_u32 s46, 3")
    g.e(f"s_cbranch_scc1 {name}_fin")
    keep = list(g.vq)
    final_flag_wave(g, name, 2)
    g.e("s_endpgm")
    g.label(f"{name}_fin")
    g.vq = keep
    g.e(f"s_load_dwordx2 s[8:9], s[0:1], {ARG['out']}")
    poll_loop(g, f"{name}_pa2", f"{name}_ga2", 0, True)
    R = SplitReduce(g)
    A, U = R.A, R.U
    for p in range(16):
        for i in range(2):
            R.load(p, i)
    g.wait(vtags=["stl"])
    g.e("s_barrier")
    row_addrs(g)
    srd(g, 16, 40, X1_OFF, ACT_BYTES)
    srd(g, 20, 40, MOD2_OFF, 9216)
    g.e(f"s_mov_b32 s54, {INV_LOG2E_SQ:#x}")
    g.e(f"s_mov_b32 s55, {INV_LOG2E_SQ:#x}")
    X, gb = R.take(3), R.take(6)
    row_loads(g, X, 16, "x")
    tab_loads(g, gb, 20, 6912, "x")
    g.e("s_waitcnt lgkmcnt(0)")
    g.e(f"s_mov_b32 s10, {ACT_BYTES}")
    g.e("s_mov_b32 s11, 0x20000")
    for p in range(6):
        for i in range(2):
            R.use(p, i)
    g.e("s_barrier")
    for p in range(16):
        R.load(p, 2)

    def finish(i):
        a_ = A + 8 * i
        for k in range(0, 8, 2):
            g.e(f"v_pk_mul_f32 {vr(a_+k, 2)}, {vr(a_+k, 2)}, s[54:55]")
        round8(g, a_, U, "s53")
        for k in range(0, 8, 2):
            g.e(f"v_pk_mul_f32 {vr(a_+k, 2)}, {vr(a_+k, 2)}, {vr(gb[2*i+k//4]+k%4, 2)}")
        round8(g, a_, U, "s53")
        unpack8(g, X[i], U, "s53")
        for k in range(0, 8, 2):
            g.e(f"v_pk_add_f32 {vr(a_+k, 2)}, {vr(a_+k, 2)}, {vr(U+k, 2)}")
        for k in range(4):
            g.e(f"v_cvt_pk_bf16_f32 v{X[i]+k}, v{a_+2*k}, v{a_+2*k+1}")
        row_stores(g, X, 8, i)

    for p in range(6, 16):
        for i in range(2):
            R.use(p, i)
    g.wait(vtags=["x"])
    finish(0)
    finish(1)
    for p in range(16):
        R.use(p, 2)
    finish(2)


def rt_final(g):
    g.e("s_waitcnt vmcnt(0)")
    g.e("s_memrealtime s[58:59]")
    g.e("s_waitcnt lgkmcnt(0)")
    srd(g, 60, 40, 0x8220000, 0x10000)
    g.e("v_lshrrev_b32 v1, 6, v0")
    g.e("v_lshlrev_b32 v1, 3, v1")
    g.e("s_lshl_b32 s55, s2, 7")
    g.e("v_add_u32 v1, s55, v1")
    g.e("v_mov_b32 v2, s94")
    g.e("v_mov_b32 v3, s58")
    g.e("buffer_store_dwordx2 v[2:3], v1, s[60:63], 0 offen")


def epilogue_final(g, name):
    Q0, A, U, X, GB = 64, 40, 8, 244, 220
    g.e(f"s_load_dwordx2 s[8:9], s[0:1], {ARG['out']}")
    g.lines(f"""
    s_lshl_b32 s56, s45, 4
    s_add_u32 s56, s56, s44
    s_mul_i32 s57, s56, 9216
    s_lshl_b32 s58, s45, 7
    s_add_u32 s58, s58, {FLAG_OFF + 4096}
    """)
    srd(g, 60, 40, "s58", 64)
    srd(g, 12, 40, PART2_OFF, 16 * ACT_BYTES)
    srd(g, 16, 40, X1_OFF, ACT_BYTES)
    srd(g, 28, 40, MOD2_OFF, 9216)
    g.lines(f"""
    v_lshlrev_b32 v16, 4, v0
    v_add_u32 v16, s57, v16
    v_add_u32 v17, 6144, v16
    v_and_b32 v18, 7, v0
    v_bfe_u32 v19, v0, 3, 2
    v_lshrrev_b32 v20, 5, v0
    v_lshlrev_b32 v21, 6, v20
    v_lshl_add_u32 v21, v19, 3, v21
    v_mul_u32_u24 v22, 1152, v18
    v_add3_u32 v22, v22, v21, s57
    v_lshlrev_b32 v23, 1, v21
    v_and_b32 v48, 15, v2
    v_lshlrev_b32 v48, 2, v48
    s_lshl_b32 s58, s44, 2
    v_mov_b32 v49, s58
    v_mov_b32 v50, 1
    s_mov_b32 s59, 0x80000
    s_waitcnt vmcnt(0) lgkmcnt(0)
    s_mov_b32 s10, {ACT_BYTES}
    s_mov_b32 s11, 0x20000
    s_barrier
    s_cmp_lg_u32 s46, 3
    s_cbranch_scc1 {name}_fin
    s_mov_b64 exec, 1
    buffer_store_dword v50, v49, s[60:63], 0 offen sc1
    s_mov_b64 exec, -1
    """)
    g.label(f"{name}_poll3")
    g.e("buffer_load_dword v51, v48, s[60:63], 0 offen sc1")
    g.e("s_waitcnt vmcnt(0)")
    g.e("v_cmp_ne_u32 vcc, 1, v51")
    g.e("s_sub_u32 s59, s59, 1")
    g.e(f"s_cbranch_scc1 {name}_got3")
    g.e(f"s_cbranch_vccz {name}_got3")
    g.e("s_sleep 2")
    g.e(f"s_branch {name}_poll3")
    g.label(f"{name}_got3")
    g.e("s_barrier")
    g.e("s_endpgm")
    g.label(f"{name}_fin")
    g.vq = []
    for i in range(3):
        g.vm(f"buffer_load_dwordx2 {vr(X+4*i, 2)}, v22, s[16:19], 0 offen offset:{i*384}", "x")
        g.vm(f"buffer_load_dwordx2 {vr(X+4*i+2, 2)}, v22, s[16:19], 0 offen offset:{i*384+32}", "x")
    gb = [GB + 4 * k for k in range(6)]
    g.e("s_movk_i32 s59, 6912")
    for i in range(3):
        for h in range(2):
            g.vm(f"buffer_load_dwordx4 {vr(gb[2*i+h], 4)}, v23, s[28:31], s59 offen offset:{i*768+h*64}", "x")
    g.e("s_barrier")
    free = [Q0 + 4 * k for k in range(39)]
    where = {}

    def pload(p):
        g.e(f"s_mov_b32 s59, {p*ACT_BYTES}")
        for i in range(3):
            r = free.pop(0)
            where[(p, i)] = r
            g.vm(f"buffer_load_dwordx4 {vr(r, 4)}, v{17 if i == 2 else 16}, s[12:15], s59 offen offset:{3072 if i == 1 else 0} sc1", f"p{p}")

    for p in range(13):
        pload(p)
    g.e(f"s_mov_b32 s54, {INV_LOG2E_SQ:#x}")
    g.e(f"s_mov_b32 s55, {INV_LOG2E_SQ:#x}")
    for p in range(16):
        g.wait(vtags=[f"p{p}"])
        for i in range(3):
            r = where[(p, i)]
            if p == 0:
                unpack8(g, r, A + 8 * i, "s53")
            else:
                unpack8(g, r, U, "s53")
                for k in range(4):
                    g.e(f"v_pk_add_f32 {vr(A+8*i+2*k, 2)}, {vr(A+8*i+2*k, 2)}, {vr(U+2*k, 2)}")
            free.append(r)
        if p < 3:
            pload(13 + p)
    for i in range(3):
        a_ = A + 8 * i
        for k in range(0, 8, 2):
            g.e(f"v_pk_mul_f32 {vr(a_+k, 2)}, {vr(a_+k, 2)}, s[54:55]")
        round8(g, a_, U, "s53")
        for k in range(0, 8, 2):
            g.e(f"v_pk_mul_f32 {vr(a_+k, 2)}, {vr(a_+k, 2)}, {vr(gb[2*i+k//4]+k%4, 2)}")
        round8(g, a_, U, "s53")
        unpack8(g, X + 4 * i, U, "s53")
        for k in range(0, 8, 2):
            g.e(f"v_pk_add_f32 {vr(a_+k, 2)}, {vr(a_+k, 2)}, {vr(U+k, 2)}")
        for k in range(4):
            g.e(f"v_cvt_pk_bf16_f32 v{X+4*i+k}, v{a_+2*k}, v{a_+2*k+1}")
        g.vm(f"buffer_store_dwordx2 {vr(X+4*i, 2)}, v22, s[8:11], 0 offen offset:{i*384}")
        g.vm(f"buffer_store_dwordx2 {vr(X+4*i+2, 2)}, v22, s[8:11], 0 offen offset:{i*384+32}")


def stamp_end(g, debug, wsoff):
    g.e("s_waitcnt vmcnt(0)")
    g.e("s_memrealtime s[90:91]" if debug == 3 else "s_memtime s[90:91]")
    g.e("s_memrealtime s[94:95]")
    g.e("s_waitcnt lgkmcnt(0)")
    srd(g, 8, 40, wsoff, 0x100000)
    for k in range(16):
        g.e(f"v_mov_b32 v{48+k}, s{64+2*k}")
    g.e("s_lshl_b32 s58, s2, 2")
    g.e("s_add_u32 s58, s58, s46")
    g.e("s_lshl_b32 s58, s58, 6")
    g.e("v_mov_b32 v1, s58")
    for k in range(4):
        g.vm(f"buffer_store_dwordx4 v[{48+4*k}:{51+4*k}], v1, s[8:11], 0 offen offset:{16*k}")


def place_groups(T, grps, gp, step):
    for grp in grps:
        ns = sum(1 for op in grp if op.kind != "vm")
        for op in grp:
            if op.kind == "vm":
                T.fixed[gp].append(op)
                gp += step
            else:
                T.fixed[gp - (2 * ns if asmlib.DMA_ALONE and step >= 4 else ns)].append(op)
                ns -= 1
    return gp


def out_proj(T, i, B, araddr, nks, bfrag, acc0, pk0, LA, stf, last):
    p0 = len(T.m)
    pend = []
    for k in range(4 * nks):
        ks, nb = k // 4, k % 4
        idx = p0 + 2 * k
        rds = [araddr(nb, ks, u) for u in range(2)]
        pend.append(T.frag(rds, idx - LA(idx), B, idx + 1, f"o{i}.{k}"))
    for k in range(4 * nks):
        ks, nb = k // 4, k % 4
        need = [t for kk in range(k, k + 4) for t in pend[kk][1]] if k % 4 == 0 else []
        for b in range(2):
            acc = acc0 + 16 * b + 4 * nb
            T.mfma(vr(acc, 4), pend[k][0], bfrag(b, ks), "0" if ks == 0 else vr(acc, 4), need if b == 0 else [])
    E = len(T.m) - 1
    cv, st = [], []
    for b in range(2):
        for c in range(2):
            acc, pk = acc0 + 16 * b + 8 * c, pk0 + 8 * b + 4 * c
            for r in range(4):
                cv.append(f"v_cvt_pk_bf16_f32 v{pk+r}, v{acc+2*r}, v{acc+2*r+1}")
            st.append((f"s_mov_b32 s56, {i*1024 + b*18432}",
                       f"buffer_store_dwordx4 {vr(pk, 4)}, v{STV}, s[32:35], s56 offen offset:{c*512}{stf}"))
    if not last:
        sp = SPREAD
        for k, (sm, s_) in enumerate(st):
            at = E + (26 + 4 * k if not sp else 12 + sp * k)
            for c in cv[4 * k:4 * k + 4]:
                T.v(c, E + 4, (E + 25) if not sp else at - 1)
            if k % 2 == 0:
                T.fixed[at - 2].append(Op(sm, "s"))
            T.fixed[at].append(Op(s_, "vm", tag=f"st{i}"))
        return []
    out = ["s_nop 7"]
    for k, (sm, s_) in enumerate(st):
        out += cv[4 * k:4 * k + 4] + [sm, s_]
    return out


def gen_k4(name, debug=None, stf=" sc1", mapmode=0, LA=24, fused=False, chain=False, final=False, split=False, vq0=None, fine=False, exact=True, spread=0, cpf=0, w2pf=False, cpf2=None, nodma=False, nobar=False, nosilu=False, nohoist=False):
    global SPREAD, XFLAG
    SPREAD = spread
    XFLAG = ' sc1' if fused else ''
    g = Gen()
    if debug:
        if not split:
            g.e("s_memrealtime s[92:93]")
        g.e("s_memrealtime s[64:65]" if debug == 3 else "s_memtime s[64:65]")
    if split:
        g.vq = list(vq0)
        mid_split(g, name, mapmode, fine)
    elif fused:
        prologue_fused(g, name, mapmode, fine, exact, chain)
    else:
        prologue(g, name, mapmode)
    if cpf:
        kattn.code_prefetch_setup(g, cpf, 61)
    T = TL16(RING, NRING)
    pstart, gend = {}, {}

    def hfrag(b, c):
        return ar(HA + 8 * c + 4 * b, 4) if c < 6 else vr(YB + 8 * (c - 6) + 4 * b, 4)

    def silu(gi, early, deads):
        buf = XB if gi % 2 == 0 else YB
        n = 0
        for cc in range(3):
            for b in range(2):
                dead = deads(cc, b)
                c = 3 * gi + cc
                G = [buf + 8 * (2 * cc + h) + 4 * b + r for h in range(2) for r in range(4)]
                U = [x + 48 for x in G]
                t = TMP + 8 * (n % 2)
                n += 1
                for r in range(8):
                    T.v(f"v_exp_f32 v{t+r}, v{G[r]}", early, dead)
                    T.v(f"v_mul_f32 v{G[r]}, v{G[r]}, v{U[r]}", early, dead)
                for r in range(8):
                    T.v(f"v_add_f32 v{t+r}, 1.0, v{t+r}", early, dead)
                for r in range(8):
                    T.v(f"v_rcp_f32 v{t+r}, v{t+r}", early, dead)
                for r in range(8):
                    T.v(f"v_mul_f32 v{G[r]}, v{G[r]}, v{t+r}", early, dead)
                for k in range(4):
                    dst = TMP + 16 + k if c < 6 else YB + 8 * (c - 6) + 4 * b + k
                    T.v(f"v_cvt_pk_bf16_f32 v{dst}, v{G[2*k]}, v{G[2*k+1]}", early, dead)
                if c < 6:
                    for k in range(4):
                        T.v(f"v_accvgpr_write_b32 a{HA+8*c+4*b+k}, v{TMP+16+k}", early, dead)

    for B in range(18):
        gi, kb = B // 6, B % 6
        pstart[B] = len(T.m)
        buf = XB if gi % 2 == 0 else YB
        pend = []
        for k in range(36):
            ks, fb, mm = k // 12, (k % 12) // 2, k % 2
            idx = pstart[B] + 2 * k
            off = mm * 18432 + ks * 6144 + (fb >> 1) * 64
            rds = [f"ds_read_b64_tr_b16 {{}}, v{A3+2*(B%4)+(fb&1)} offset:{off+u*3072}" for u in range(2)]
            pend.append(T.frag(rds, idx - LA, B, idx + 1, f"w{B}.{k}"))
        for k in range(36):
            ks, fb, mm = k // 12, (k % 12) // 2, k % 2
            s = 3 * kb + ks
            need = [t for kk in range(k, k + 4) for t in pend[kk][1]] if k % 4 == 0 else []
            for b in range(2):
                acc = buf + 48 * mm + 8 * fb + 4 * b
                T.mfma(vr(acc, 4), pend[k][0], hb(b, s), "0" if s == 0 else vr(acc, 4), need if b == 0 else [],
                       [f"xr{s}.0", f"xr{s}.1"] if gi == 0 else [])
        if kb == 5:
            gend[gi] = len(T.m) - 1
            if gi < 2:
                silu(gi, gend[gi] + 3, lambda cc, b, e=gend[gi]: e + 400)
    p4 = len(T.m)
    silu(2, gend[2] + 3, lambda cc, b: p4 + 8 * (6 + cc) - 1)

    final_tail = []
    for i in range(9):
        B = 18 + i
        pstart[B] = len(T.m)
        final_tail = out_proj(
            T, i, B, lambda nb, ks, u: f"ds_read_b64_tr_b16 {{}}, v{A4+4*(B%4)+nb} offset:{ks*4096+u*2048}",
            9, hfrag, YB + 32 + 32 * (i % 2), XB + 16 * (i % 2), lambda idx: LA, stf, i == 8)

    bar = {}
    for B in range(27):
        gp = max(-1, T.first_read[B] - 1)
        bar[B] = gp
        op = Op("s_barrier", "s", vneed=[f"dma{B}"] + (["st5"] if split and B == 26 else []), cost=20)
        if B == 0:
            if not fused:
                T.fixed[gp].insert(0, op)
        elif not nobar:
            T.tail[gp].append(op)
    if nosilu:
        T.q = [o for o in T.q if "cvt" in o.text]
    if nohoist:
        for k_, v_ in T.flex.items():
            T.fixed[k_] = v_ + T.fixed[k_]
        T.flex = defaultdict(list)
    for B in range(27):
        grps = []
        if B <= 4 and not fused:
            grps += [xload_ops(s, b) for s in range(3 * B + 3, 3 * B + 6) for b in range(2)]
        if B <= 2 and fused:
            grps += [xload_ops(s, b) for s in range(*((4, 9), (9, 15), (15, 18))[B]) for b in range(2)]
        if B + 2 <= 26 and not nodma and not (fused and B < 2):
            grps += dma_ops(B + 2)
        place_groups(T, grps, bar[B] + 4 if B else 3, 4 if B else 3)
    if cpf:
        T.fixed[51].append(Op("global_load_dword v60, v61, s[60:61]", "vm", tag="cpf"))
    if w2pf:
        gp = bar[w2pf] + 44
        nsh = {0: 16, 1: 4, 2: 8}[mapmode]
        pre = [f"s_and_b32 s58, s45, {nsh-1}", "s_lshl_b32 s58, s58, 2", "s_add_u32 s58, s58, s46", f"s_mul_i32 s58, s58, {331776 // (4*nsh)}"]
        for k, t_ in enumerate(pre):
            T.tail[gp + k].append(Op(t_, "s"))
        T.tail[gp + 3].append(Op(f"v_lshlrev_b32 v61, 3, v{XHV}", "v"))
        for k in range(-(-(331776 // (4 * nsh)) // 8192)):
            T.fixed[gp + 5 + 12 * k].append(Op("buffer_load_dword v60, v61, s[20:23], s58 offen", "vm", tag="pf"))
            T.tail[gp + 5 + 12 * k].append(Op("s_add_u32 s58, s58, 0x2000", "s"))
        gp += 24
        if cpf2:
            T.tail[gp + 6].append(Op("s_getpc_b64 s[60:61]", "s"))
            T.tail[gp + 6].append(Op(f"{name}_pc", "label", cost=0))
            T.tail[gp + 7].append(Op(f"s_add_u32 s60, s60, {cpf2}-{name}_pc", "s"))
            T.tail[gp + 7].append(Op("s_addc_u32 s61, s61, 0", "s"))
            T.tail[gp + 8].append(Op(f"v_lshlrev_b32 v61, 1, v{XHV}", "v"))
            T.fixed[gp + 10].append(Op("global_load_dword v60, v61, s[60:61]", "vm", tag="pf"))
    if debug:
        pts = [-1, 0, pstart[3], pstart[6], pstart[9], pstart[12], pstart[15], pstart[18], pstart[19], pstart[21], pstart[24], len(T.m) - 1]
        for k, gp in enumerate(pts[:2] if fine else pts):
            T.fixed[gp].append(Op(f"{'s_memrealtime' if debug == 3 else 's_memtime'} s[{66+2*k}:{67+2*k}]", "s"))
    if split:
        split_setup(T, pstart[20] + 1, FLAG_OFF + 4096, PART2_OFF)
        split_signal(T, bar[26], len(T.m) - 6)
    marks, stats = {}, {}
    schedule2(g, T.m, T.fixed, T.flex, T.tail, T.q, 8, marks=marks, stats=stats)
    for ln in final_tail:
        if ln.startswith("buffer"):
            g.vm(ln, "stl")
        else:
            g.e(ln)
    if debug and not split:
        stamp_end(g, debug, 0x8100000)
    if split:
        final_split(g, name)
        if debug:
            stamp_end(g, debug, 0x8100000)
    elif final:
        epilogue_final(g, name)
        if debug:
            rt_final(g)
    g.label(f"{name}_end")
    g.e("s_endpgm")
    probs = check_hazards(g.seq, name)
    cum = lambda a, b: sum(max(16, 8 + stats[k]) for k in range(a, b))
    info = dict(n_mfma=len(T.m), max_lq=g.max_lq, est_cycles=cum(0, len(T.m)), n_over=sum(1 for v in stats.values() if v > 8),
                g3=[cum(pstart[6 * k], gend[k] + 1) for k in range(3)], g4=cum(p4, len(T.m)), padded=g.padded)
    return g.text(), probs, info
```

```python
from asmlib import *

SELFPF = False
XH_OFF = 0
H2_OFF = 0x240000
X1_OFF = 0x480000
TAB_OFF = 0x6C0000
MOD2_OFF = 0x6C2000
FLAG_OFF = 0x6C6000
PART_OFF = 0x700000
ACT_BYTES = 2359296
PART_BYTES = 16 * ACT_BYTES
PART2_OFF = PART_OFF + PART_BYTES

ARG = dict(x=0, k=8, v=16, wq=24, wo=32, w1=48, w3=56, w2=64, c=72, wmod=80, out=88, dbg=96, ws=104)


def srd(g, d, base, off, nbytes):
    if isinstance(off, str):
        g.e(f"s_add_u32 s{d}, s{base}, {off}")
        g.e(f"s_addc_u32 s{d+1}, s{base+1}, 0")
    elif off:
        g.e(f"s_add_u32 s{d}, s{base}, {off:#x}")
        g.e(f"s_addc_u32 s{d+1}, s{base+1}, 0")
    else:
        g.e(f"s_mov_b32 s{d}, s{base}")
        g.e(f"s_mov_b32 s{d+1}, s{base+1}")
    g.e(f"s_mov_b32 s{d+2}, {nbytes:#x}")
    g.e(f"s_mov_b32 s{d+3}, 0x20000")


def unpack8(g, src, dst, smask):
    for i in range(4):
        g.e(f"v_lshlrev_b32 v{dst+2*i}, 16, v{src+i}")
        g.e(f"v_and_b32 v{dst+2*i+1}, {smask}, v{src+i}")


def round8(g, x, tmp, smask):
    for i in range(4):
        g.e(f"v_cvt_pk_bf16_f32 v{tmp+i}, v{x+2*i}, v{x+2*i+1}")
    unpack8(g, tmp, x, smask)


def round1(g, x):
    g.e(f"v_cvt_pk_bf16_f32 v{x}, v{x}, v{x}")
    g.e(f"v_lshlrev_b32 v{x}, 16, v{x}")


def xlane_sum(g, regs, tmps):
    g.e("s_nop 1")
    for r in regs:
        g.e(f"v_add_f32_dpp v{r}, v{r}, v{r} row_ror:8 row_mask:0xf bank_mask:0xf")
    for swap in ("v_permlane16_swap_b32", "v_permlane32_swap_b32"):
        for r, t in zip(regs, tmps):
            g.e(f"v_mov_b32 v{t}, v{r}")
        g.e("s_nop 1")
        for r, t in zip(regs, tmps):
            g.e(f"{swap} v{r}, v{t}")
        g.e("s_nop 1")
        for r, t in zip(regs, tmps):
            g.e(f"v_add_f32 v{r}, v{r}, v{t}")


def row_reduce(g, val, tmp, rd, vw, vr, ldsoff):
    xlane_sum(g, [val], [tmp])
    g.ds(f"ds_write_b32 v{vw}, v{val} offset:{ldsoff}")
    g.wait(lall=True)
    g.e("s_barrier")
    g.ds(f"ds_read_b128 v[{rd}:{rd+3}], v{vr} offset:{ldsoff}")
    g.ds(f"ds_read_b128 v[{rd+4}:{rd+7}], v{vr} offset:{ldsoff+16}")
    g.ds(f"ds_read_b32 v{rd+8}, v{vr} offset:{ldsoff+32}")
    g.wait(lall=True)
    g.e(f"v_add_f32 v{val}, v{rd}, v{rd+1}")
    for i in range(2, 9):
        g.e(f"v_add_f32 v{val}, v{val}, v{rd+i}")


def layernorm8(g, x, sc, smask, vw, vr):
    m, t, q, rd, d = sc, sc + 1, sc + 2, sc + 4, sc + 16
    g.e(f"v_add_f32 v{m}, v{x}, v{x+1}")
    for i in range(2, 8):
        g.e(f"v_add_f32 v{m}, v{m}, v{x+i}")
    row_reduce(g, m, t, rd, vw, vr, 0)
    g.e(f"v_mul_f32 v{m}, 0x3ae38e39, v{m}")
    for i in range(8):
        g.e(f"v_sub_f32 v{d+i}, v{x+i}, v{m}")
    g.e(f"v_mul_f32 v{q}, v{d}, v{d}")
    for i in range(1, 8):
        g.e(f"v_fmac_f32 v{q}, v{d+i}, v{d+i}")
    row_reduce(g, q, t, rd, vw, vr, 512)
    g.e(f"v_mul_f32 v{q}, 0x3ae38e39, v{q}")
    round1(g, m)
    round1(g, q)
    g.e(f"v_add_f32 v{q}, 0x3727c5ac, v{q}")
    round1(g, q)
    g.e(f"v_sqrt_f32 v{q}, v{q}")
    g.e("s_nop 0")
    round1(g, q)
    g.e(f"v_rcp_f32 v{t}, v{q}")
    for i in range(8):
        g.e(f"v_sub_f32 v{x+i}, v{x+i}, v{m}")
    round8(g, x, rd, smask)
    for i in range(8):
        g.e(f"v_mul_f32 v{d+i}, v{x+i}, v{t}")
    for i in range(8):
        g.e(f"v_fma_f32 v{x+i}, -v{d+i}, v{q}, v{x+i}")
    for i in range(8):
        g.e(f"v_fmac_f32 v{d+i}, v{x+i}, v{t}")
    for i in range(4):
        g.e(f"v_cvt_pk_bf16_f32 v{rd+i}, v{d+2*i}, v{d+2*i+1}")
    return rd


def lane_setup(g):
    g.e("v_and_b32 v6, 63, v0")
    g.e("v_lshrrev_b32 v7, 6, v0")
    g.e("v_and_b32 v2, 7, v0")
    g.e("v_lshrrev_b32 v1, 3, v0")
    g.e("v_lshlrev_b32 v1, 4, v1")
    g.e("v_mul_u32_u24 v4, 48, v2")
    g.e("v_lshl_add_u32 v3, v7, 2, v4")
    g.e("v_lshrrev_b32 v5, 4, v0")
    g.e("v_lshlrev_b32 v5, 10, v5")
    g.e("v_bfe_u32 v6, v0, 3, 1")
    g.e("v_lshl_add_u32 v5, v6, 9, v5")
    g.e("v_lshl_add_u32 v5, v2, 4, v5")


def frag_off(g, dst):
    g.e("s_lshr_b32 s40, s2, 2")
    g.e("s_mul_i32 s40, s40, 36864")
    g.e("s_and_b32 s41, s2, 3")
    g.e("s_lshl_b32 s41, s41, 7")
    g.e("s_add_u32 s40, s40, s41")
    g.e(f"v_add_u32 v{dst}, s40, v5")


def rowmajor_off(g, dst):
    g.e("s_mul_i32 s42, s2, 9216")
    g.e(f"v_mul_u32_u24 v{dst}, 1152, v2")
    g.e(f"v_add3_u32 v{dst}, v{dst}, v1, s42")


def rt_begin(g, debug):
    if debug:
        g.e("s_memrealtime s[66:67]")


def rt_end(g, debug, slot, wsreg=6):
    if not debug:
        return
    g.e("s_waitcnt vmcnt(0) lgkmcnt(0)")
    g.e("s_memrealtime s[58:59]")
    g.e("s_waitcnt lgkmcnt(0)")
    srd(g, 60, wsreg, 0x8200000 + slot * 0x10000, 0x10000)
    g.e("v_lshrrev_b32 v1, 6, v0")
    g.e("v_lshlrev_b32 v1, 3, v1")
    g.e("s_lshl_b32 s55, s2, 7")
    g.e("v_add_u32 v1, s55, v1")
    g.e("v_mov_b32 v2, s66")
    g.e("v_mov_b32 v3, s58")
    g.e("buffer_store_dwordx2 v[2:3], v1, s[60:63], 0 offen")


def self_prefetch(g, nbytes):
    g.e("s_getpc_b64 s[64:65]")
    g.e("v_lshlrev_b32 v62, 6, v0")
    g.e(f"v_min_u32 v62, {nbytes - 64}, v62")
    g.e("global_load_dword v63, v62, s[64:65]")


def gen_k1(name, debug=False, pf=False, qscale=None, zflags=False, wide=False):
    g = Gen()
    rt_begin(g, debug)
    if SELFPF:
        self_prefetch(g, 2816)
    g.e(f"s_cmp_ge_u32 s2, {364 if wide else 310}")
    g.e(f"s_cbranch_scc1 {name}_end")
    g.e(f"s_load_dwordx2 s[4:5], s[0:1], {ARG['x']}")
    g.e(f"s_load_dwordx4 s[8:11], s[0:1], {ARG['c']}")
    g.e(f"s_load_dwordx2 s[6:7], s[0:1], {ARG['ws']}")
    if pf:
        g.e(f"s_load_dwordx8 s[44:51], s[0:1], {ARG['k']}")
        g.e(f"s_load_dwordx4 s[52:55], s[0:1], {ARG['w1']}")
        g.e(f"s_load_dwordx2 s[36:37], s[0:1], {ARG['w2']}")
    g.e("s_mov_b32 s30, 0xffff0000")
    if wide:
        g.e("s_mov_b32 s68, s2")
        g.e("s_add_u32 s2, s2, 256")
        g.e("s_cmp_lt_u32 s2, 364")
        g.e(f"s_cbranch_scc1 {name}_mod")
        g.e("s_sub_u32 s2, s2, 364")
    else:
        g.e("s_cmp_ge_u32 s2, 256")
        g.e(f"s_cbranch_scc1 {name}_mod")
    lane_setup(g)
    rowmajor_off(g, 8)
    frag_off(g, 9)
    g.e("s_waitcnt lgkmcnt(0)")
    srd(g, 12, 4, 0, ACT_BYTES)
    srd(g, 16, 6, XH_OFF, ACT_BYTES)
    g.vm("buffer_load_dwordx4 v[12:15], v8, s[12:15], 0 offen", "x")
    if pf:
        g.e("v_and_b32 v60, 63, v0")
        g.e("v_lshlrev_b32 v59, 17, v60")
        if pf >= 2:
            g.e("v_lshrrev_b32 v58, 6, v0")
            g.e("s_mul_i32 s35, s2, 9")
            g.e("v_add_u32 v58, s35, v58")
            g.e("v_lshrrev_b32 v57, 3, v58")
            g.e("v_lshlrev_b32 v57, 19, v57")
            g.e("v_and_b32 v58, 7, v58")
            g.e("v_lshl_add_u32 v57, v58, 13, v57")
            g.e("v_lshl_add_u32 v57, v60, 7, v57")
        for k, (b, nb) in enumerate(((44, 8388608), (46, 8388608), (48, 4718592), (50, 4718592), (52, 5308416), (54, 5308416), (36, 5308416))):
            srd(g, 20, b, 0, nb)
            g.vm("buffer_load_dword v61, v59, s[20:23], 0 offen", "pf")
            if pf >= 2 and k < 2:
                g.vm("buffer_load_dword v61, v57, s[20:23], 0 offen", "pf")
    g.wait(vtags=["x"])
    unpack8(g, 12, 16, "s30")
    pk = layernorm8(g, 16, 24, "s30", 3, 4)
    g.vm(f"buffer_store_dwordx4 v[{pk}:{pk+3}], v9, s[16:19], 0 offen")
    rt_end(g, debug, 0)
    g.e("s_endpgm")
    g.vq = []
    if wide:
        g.label(f"{name}_mod")
        g.e("s_sub_u32 s20, s2, 256")
        g.e("v_lshrrev_b32 v1, 2, v0")
        g.e("v_and_b32 v2, 3, v0")
        g.e("s_movk_i32 s21, 6912")
        g.e("v_mul_lo_u32 v3, v1, s21")
        g.e("v_lshl_add_u32 v3, v2, 4, v3")
        g.e("s_lshl_b32 s22, s20, 6")
        g.e("v_add_u32 v3, s22, v3")
        g.e("v_lshlrev_b32 v4, 1, v1")
        g.e("s_waitcnt lgkmcnt(0)")
        srd(g, 12, 8, 0, 1152)
        srd(g, 16, 10, 0, 576 * 6912)
        for i in range(4):
            g.vm(f"buffer_load_ushort v{8+i}, v4, s[12:15], 0 offen offset:{i*288}", f"c{i}")
        for i in range(4):
            g.e(f"s_mov_b32 s23, {i*144*6912}")
            g.vm(f"buffer_load_dwordx4 v[{16+4*i}:{19+4*i}], v3, s[16:19], s23 offen", f"w{i}")
        srd(g, 24, 6, TAB_OFF, 0xD000)
        g.e("v_lshrrev_b32 v5, 6, v0")
        g.e("v_lshlrev_b32 v6, 7, v5")
        g.e("v_lshl_add_u32 v6, v2, 5, v6")
        g.e("v_readfirstlane_b32 s31, v5")
        g.e("s_mul_i32 s32, s20, 57")
        g.e("s_lshr_b32 s32, s32, 10")
        g.e("s_mul_i32 s33, s32, 18")
        g.e("s_sub_u32 s33, s20, s33")
        g.e("s_lshl_b32 s33, s33, 5")
        g.e("v_and_b32 v7, 31, v0")
        g.e("v_lshlrev_b32 v40, 2, v7")
        g.e("v_add_u32 v7, s33, v7")
        g.wait(vtags=["c3"])
        for i in range(4):
            g.e(f"v_lshlrev_b32 v{8+i}, 16, v{8+i}")
        for i in range(4):
            g.e(f"v_mul_f32 v{48+i}, 0xbfb8aa3b, v{8+i}")
        for i in range(4):
            g.e(f"v_exp_f32 v{48+i}, v{48+i}")
        for i in range(4):
            g.e(f"v_add_f32 v{48+i}, 1.0, v{48+i}")
        for i in range(4):
            g.e(f"v_rcp_f32 v{48+i}, v{48+i}")
        for i in range(4):
            g.e(f"v_mul_f32 v{8+i}, v{8+i}, v{48+i}")
        for i in range(2):
            g.e(f"v_cvt_pk_bf16_f32 v{48+i}, v{8+2*i}, v{9+2*i}")
        for i in range(2):
            g.e(f"v_lshlrev_b32 v{8+2*i}, 16, v{48+i}")
            g.e(f"v_and_b32 v{9+2*i}, s30, v{48+i}")
        for i in range(4):
            g.wait(vtags=[f"w{i}"])
            unpack8(g, 16 + 4 * i, 48, "s30")
            for e_ in range(8):
                g.e(f"{'v_mul_f32' if i == 0 else 'v_fmac_f32'} v{56+e_}, v{8+i}, v{48+e_}")
        for r in range(56, 64):
            g.e(f"v_add_f32_dpp v{r}, v{r}, v{r} row_ror:4 row_mask:0xf bank_mask:0xf")
        xlane_sum(g, list(range(56, 64)), list(range(48, 56)))
        g.ds("ds_write_b128 v6, v[56:59]")
        g.ds("ds_write_b128 v6, v[60:63] offset:16")
        g.wait(lall=True)
        g.e("s_barrier")
        g.e("s_cmp_lg_u32 s31, 0")
        g.e(f"s_cbranch_scc1 {name}_end")
        for w in range(9):
            g.ds(f"ds_read_b32 v{16+w}, v40 offset:{w*128}")
        g.e("v_lshlrev_b32 v6, 2, v0")
        g.wait(lall=True)
        g.e("v_add_f32 v16, v16, v17")
        for w in range(2, 9):
            g.e(f"v_add_f32 v16, v16, v{16+w}")
        round1(g, 16)
    else:
        g.label(f"{name}_mod")
        g.e("s_sub_u32 s20, s2, 256")
        g.e("v_lshrrev_b32 v1, 3, v0")
        g.e("v_and_b32 v2, 7, v0")
        g.e("s_movk_i32 s21, 6912")
        g.e("v_mul_lo_u32 v3, v1, s21")
        g.e("v_lshl_add_u32 v3, v2, 4, v3")
        g.e("s_lshl_b32 s22, s20, 7")
        g.e("v_add_u32 v3, s22, v3")
        g.e("v_lshlrev_b32 v4, 1, v1")
        g.e("s_waitcnt lgkmcnt(0)")
        srd(g, 12, 8, 0, 1152)
        srd(g, 16, 10, 0, 576 * 6912)
        srd(g, 24, 6, TAB_OFF, 0xA000)
        for i in range(8):
            g.vm(f"buffer_load_ushort v{8+i}, v4, s[12:15], 0 offen offset:{i*144}", f"c{i}")
        for i in range(8):
            g.e(f"s_mov_b32 s23, {i*72*6912}")
            g.vm(f"buffer_load_dwordx4 v[{16+4*i}:{19+4*i}], v3, s[16:19], s23 offen", f"w{i}")
        g.wait(vtags=["c7"])
        for i in range(8):
            g.e(f"v_lshlrev_b32 v{8+i}, 16, v{8+i}")
        for i in range(8):
            g.e(f"v_mul_f32 v{48+i}, 0xbfb8aa3b, v{8+i}")
        for i in range(8):
            g.e(f"v_exp_f32 v{48+i}, v{48+i}")
        for i in range(8):
            g.e(f"v_add_f32 v{48+i}, 1.0, v{48+i}")
        for i in range(8):
            g.e(f"v_rcp_f32 v{48+i}, v{48+i}")
        for i in range(8):
            g.e(f"v_mul_f32 v{8+i}, v{8+i}, v{48+i}")
        round8(g, 8, 48, "s30")
        for i in range(8):
            g.wait(vtags=[f"w{i}"])
            unpack8(g, 16 + 4 * i, 48, "s30")
            for e_ in range(8):
                if i == 0:
                    g.e(f"v_mul_f32 v{56+e_}, v{8+i}, v{48+e_}")
                else:
                    g.e(f"v_fmac_f32 v{56+e_}, v{8+i}, v{48+e_}")
        xlane_sum(g, list(range(56, 64)), list(range(48, 56)))
        g.e("v_lshrrev_b32 v5, 6, v0")
        g.e("v_lshlrev_b32 v6, 8, v5")
        g.e("v_lshl_add_u32 v6, v2, 5, v6")
        g.ds("ds_write_b128 v6, v[56:59]")
        g.ds("ds_write_b128 v6, v[60:63] offset:16")
        g.e("v_readfirstlane_b32 s31, v5")
        g.wait(lall=True)
        g.e("s_barrier")
        g.e("s_cmp_lg_u32 s31, 0")
        g.e(f"s_cbranch_scc1 {name}_end")
        g.e("v_lshlrev_b32 v6, 2, v0")
        for w in range(9):
            g.ds(f"ds_read_b32 v{16+w}, v6 offset:{w*256}")
        g.e("s_mul_i32 s32, s20, 57")
        g.e("s_lshr_b32 s32, s32, 9")
        g.e("s_mul_i32 s33, s32, 9")
        g.e("s_sub_u32 s33, s20, s33")
        g.e("s_lshl_b32 s33, s33, 6")
        g.e("v_add_u32 v7, s33, v0")
        g.wait(lall=True)
        g.e("v_add_f32 v16, v16, v17")
        for w in range(2, 9):
            g.e(f"v_add_f32 v16, v16, v{16+w}")
        round1(g, 16)
    g.e("s_cmp_eq_u32 s32, 1")
    g.e(f"s_cbranch_scc1 {name}_plus1")
    g.e("s_cmp_eq_u32 s32, 4")
    g.e(f"s_cbranch_scc0 {name}_addr")
    g.label(f"{name}_plus1")
    g.e("v_add_f32 v16, 1.0, v16")
    round1(g, 16)
    g.label(f"{name}_addr")
    g.e("s_cmp_ge_u32 s32, 2")
    g.e(f"s_cbranch_scc1 {name}_lin")
    if qscale:
        g.e(f"v_mul_f32 v16, {qscale:#x}, v16")
    g.e("v_lshrrev_b32 v8, 3, v7")
    g.e("v_lshlrev_b32 v8, 6, v8")
    g.e("v_and_b32 v9, 7, v7")
    g.e("v_lshl_add_u32 v8, v9, 2, v8")
    g.e("s_cmp_eq_u32 s32, 0")
    g.e("s_cselect_b32 s34, 32, 0")
    g.e("v_add_u32 v8, s34, v8")
    g.e(f"s_branch {name}_st")
    g.label(f"{name}_lin")
    base = MOD2_OFF - TAB_OFF
    g.e(f"s_mov_b32 s34, {base}")
    g.e("s_cmp_eq_u32 s32, 3")
    g.e(f"s_cselect_b32 s34, {base+4608}, s34")
    g.e("s_cmp_eq_u32 s32, 4")
    g.e(f"s_cselect_b32 s34, {base+2304}, s34")
    g.e("s_cmp_eq_u32 s32, 5")
    g.e(f"s_cselect_b32 s34, {base+6912}, s34")
    g.e("v_lshlrev_b32 v8, 2, v7")
    g.e("v_add_u32 v8, s34, v8")
    g.label(f"{name}_st")
    g.vm("buffer_store_dword v16, v8, s[24:27], 0 offen")
    if zflags:
        g.e("s_lshl_b32 s34, s20, 8")
        g.e(f"s_add_u32 s34, s34, {FLAG_OFF - TAB_OFF}")
        g.e("v_mov_b32 v9, 0")
        g.vm("buffer_store_dword v9, v6, s[24:27], s34 offen")
    rt_end(g, debug, 0)
    g.label(f"{name}_end")
    g.e("s_endpgm")
    return g, 64


NLOG2E = 0xbfb8aa3b
INV_LOG2E_SQ = 0x3ef5fdf0


def lane_setup16(g):
    g.e("v_lshrrev_b32 v7, 6, v0")
    g.e("v_and_b32 v2, 7, v0")
    g.e("v_bfe_u32 v6, v0, 3, 2")
    g.e("v_lshrrev_b32 v5, 5, v0")
    g.e("v_lshlrev_b32 v1, 6, v5")
    g.e("v_lshl_add_u32 v1, v6, 3, v1")
    g.e("v_mul_u32_u24 v4, 48, v2")
    g.e("v_lshl_add_u32 v3, v7, 2, v4")
    g.e("v_lshlrev_b32 v5, 10, v5")
    g.e("v_lshl_add_u32 v5, v6, 8, v5")
    g.e("v_lshl_add_u32 v5, v2, 4, v5")


def frag_off16(g, dst):
    g.e("s_lshr_b32 s40, s2, 1")
    g.e("s_mul_i32 s40, s40, 18432")
    g.e("s_and_b32 s41, s2, 1")
    g.e("s_lshl_b32 s41, s41, 7")
    g.e("s_add_u32 s40, s40, s41")
    g.e(f"v_add_u32 v{dst}, s40, v5")


def gen_reduce(name, final, debug=False, in16=False, out16=False, rowperm=False):
    g = Gen()
    rt_begin(g, debug)
    if SELFPF:
        self_prefetch(g, 1920 if final else 3072)
    g.e("s_cmp_ge_u32 s2, 256")
    g.e(f"s_cbranch_scc1 {name}_end")
    g.e(f"s_load_dwordx2 s[4:5], s[0:1], {ARG['out'] if final else ARG['x']}")
    g.e(f"s_load_dwordx2 s[6:7], s[0:1], {ARG['ws']}")
    g.e("s_mov_b32 s30, 0xffff0000")
    (lane_setup16 if in16 else lane_setup)(g)
    rowmajor_off(g, 56)
    if rowperm:
        g.e("s_lshr_b32 s43, s2, 2")
        g.e("s_lshl_b32 s43, s43, 5")
        g.e("s_and_b32 s44, s2, 3")
        g.e("s_lshl_b32 s44, s44, 1")
        g.e("s_add_u32 s43, s43, s44")
        g.e("s_mul_i32 s43, s43, 1152")
        g.e("v_and_b32 v8, 3, v2")
        g.e("v_lshlrev_b32 v8, 3, v8")
        g.e("v_lshrrev_b32 v10, 2, v2")
        g.e("v_add_u32 v8, v8, v10")
        g.e("v_mul_u32_u24 v8, 1152, v8")
        g.e("v_add3_u32 v8, v8, v1, s43")
    else:
        g.e("v_mov_b32 v8, v56")
    g.e("v_lshlrev_b32 v10, 4, v0")
    g.e("v_add_u32 v10, s42, v10")
    g.e("v_lshlrev_b32 v11, 1, v1")
    if not final:
        if in16:
            frag_off16(g, 9)
        elif out16:
            g.e("v_lshrrev_b32 v5, 5, v0")
            g.e("v_lshlrev_b32 v5, 10, v5")
            g.e("v_bfe_u32 v6, v0, 3, 1")
            g.e("v_lshl_add_u32 v5, v6, 9, v5")
            g.e("v_bfe_u32 v6, v0, 4, 1")
            g.e("v_lshl_add_u32 v5, v6, 3, v5")
            g.e("v_lshl_add_u32 v5, v2, 4, v5")
            frag_off16(g, 9)
        else:
            frag_off(g, 9)
    g.e("s_waitcnt lgkmcnt(0)")
    srd(g, 16, 6, PART2_OFF if final else PART_OFF, PART_BYTES)
    P = 64
    for i in range(16):
        g.e(f"s_mov_b32 s28, {i*ACT_BYTES}")
        g.vm(f"buffer_load_dwordx4 v[{P+4*i}:{P+4*i+3}], v10, s[16:19], s28 offen", f"p{i}")
    srd(g, 12, 4, 0, ACT_BYTES)
    srd(g, 20, 6, X1_OFF, ACT_BYTES)
    srd(g, 24, 6, MOD2_OFF, 9216)
    srd(g, 32, 6, H2_OFF, ACT_BYTES)
    o2 = 64 if in16 else 16

    def rowload(dst, sr, tag):
        va = 56 if sr == 20 else 8
        if in16:
            g.vm(f"buffer_load_dwordx2 v[{dst}:{dst+1}], v{va}, s[{sr}:{sr+3}], 0 offen", tag)
            g.vm(f"buffer_load_dwordx2 v[{dst+2}:{dst+3}], v{va}, s[{sr}:{sr+3}], 0 offen offset:32", tag)
        else:
            g.vm(f"buffer_load_dwordx4 v[{dst}:{dst+3}], v{va}, s[{sr}:{sr+3}], 0 offen", tag)

    def rowstore(src, sr):
        va = 56 if sr == 20 else 8
        if in16:
            g.vm(f"buffer_store_dwordx2 v[{src}:{src+1}], v{va}, s[{sr}:{sr+3}], 0 offen")
            g.vm(f"buffer_store_dwordx2 v[{src+2}:{src+3}], v{va}, s[{sr}:{sr+3}], 0 offen offset:32")
        else:
            g.vm(f"buffer_store_dwordx4 v[{src}:{src+3}], v{va}, s[{sr}:{sr+3}], 0 offen")

    def tabload(dst, off, tag):
        g.e(f"s_movk_i32 s28, {off}")
        g.vm(f"buffer_load_dwordx4 v[{dst}:{dst+3}], v11, s[24:27], s28 offen", tag)
        g.vm(f"buffer_load_dwordx4 v[{dst+4}:{dst+7}], v11, s[24:27], s28 offen offset:{o2}", tag)

    rowload(12, 20 if final else 12, "x")
    tabload(16, 6912 if final else 0, "x")
    if not final:
        tabload(128, 2304, "y")
        tabload(136, 4608, "y")
    A, T = 24, 32
    for i in range(16):
        g.wait(vtags=[f"p{i}"])
        if i == 0:
            unpack8(g, P, A, "s30")
        else:
            unpack8(g, P + 4 * i, T, "s30")
            for k in range(4):
                g.e(f"v_pk_add_f32 v[{A+2*k}:{A+2*k+1}], v[{A+2*k}:{A+2*k+1}], v[{T+2*k}:{T+2*k+1}]")
    if final and out16:
        for k in range(8):
            g.e(f"v_mul_f32 v{A+k}, {INV_LOG2E_SQ:#x}, v{A+k}")
    round8(g, A, T, "s30")
    g.wait(vtags=["x"])
    for k in range(8):
        g.e(f"v_mul_f32 v{A+k}, v{A+k}, v{16+k}")
    round8(g, A, T, "s30")
    unpack8(g, 12, 16, "s30")
    for k in range(8):
        g.e(f"v_add_f32 v{A+k}, v{A+k}, v{16+k}")
    if final:
        for k in range(4):
            g.e(f"v_cvt_pk_bf16_f32 v{T+k}, v{A+2*k}, v{A+2*k+1}")
        rowstore(T, 12)
    else:
        round8(g, A, 12, "s30")
        rowstore(12, 20)
        pk = layernorm8(g, A, 32, "s30", 3, 4)
        unpack8(g, pk, A, "s30")
        g.wait(vtags=["y"])
        for k in range(8):
            g.e(f"v_mul_f32 v{A+k}, v{A+k}, v{128+k}")
        round8(g, A, 64, "s30")
        for k in range(8):
            g.e(f"v_add_f32 v{A+k}, v{A+k}, v{136+k}")
        if out16:
            for k in range(8):
                g.e(f"v_mul_f32 v{A+k}, {NLOG2E:#x}, v{A+k}")
        for k in range(4):
            g.e(f"v_cvt_pk_bf16_f32 v{64+k}, v{A+2*k}, v{A+2*k+1}")
        if out16 and not in16:
            g.vm("buffer_store_dwordx2 v[64:65], v9, s[32:35], 0 offen")
            g.vm("buffer_store_dwordx2 v[66:67], v9, s[32:35], 0 offen offset:256")
        else:
            g.vm("buffer_store_dwordx4 v[64:67], v9, s[32:35], 0 offen")
    rt_end(g, debug, 2 if final else 1)
    g.label(f"{name}_end")
    g.e("s_endpgm")
    return g, 144
```

```python
import sys
sys.path.insert(0, "work")
import build, hb
def mk(fn, dbg=True, k2={}, k4={}, verbose=False, **kw):
    k2 = dict(debug=dbg, **k2) if "debug" not in k2 else k2
    k4 = dict(debug=dbg, **k4) if "debug" not in k4 else k4
    text, probs = build.build(kw.pop('ks', ('k1','k2','k3','k4','k5')), verbose=verbose, k2=k2, k4=k4, dbg=dbg, **kw)
    assert not probs
    open(f"work/{fn}.s", "w").write(text)
    hb.build(text, f"work/{fn}.co", 14)
    print("built", fn)
if __name__ == "__main__":
    K2 = dict(head=90, cpf=5, ones=True, deep=True, wpf=3, tabscale=True, stf=" sc1", lchk=True, cpf2=("k4_kernel_ffn", 5), mapmode=2, debug=3)
    C = dict(f16=True, a16=True, selfpf=True, dma_alone=True, ks=("k1", "k24"), k1wide=True)
    K4 = dict(cpf=6, fused=True, mapmode=2, exact=False, final=True, debug=3)
    mk("v_a", k2=K2, k4=K4, **C)
    mk("v_b", k2=dict(align=6, **K2), k4=K4, **C)
    mk("v_c", k2=dict(align=6, pad=1, **K2), k4=K4, **C)
    mk("v_d", k2=dict(spread=16, **K2), k4=dict(spread=18, **K4), **C)
    mk("v_e", k2=K2, k4=dict(LA=20, **K4), **C)
    mk("v_f", k2={**K2, "head": 100}, k4=K4, **C)
```
